```python
import torch

def _softmax(x, axis=-1):
    return torch.softmax(x, dim=axis)
def _gelu(x):
    return torch.nn.functional.gelu(x, approximate="tanh")
def _silu(x):
    return torch.nn.functional.silu(x)
def _sigmoid(x):
    return torch.sigmoid(x)
def _layernorm(x, axis=-1, eps=1e-5):
    m = x.mean(dim=axis, keepdim=True)
    v = x.var(dim=axis, keepdim=True, unbiased=False)
    return (x - m) / torch.sqrt(v + eps)
def _scatter_add(tgt, idx, src, axis=0):
    return tgt.clone().index_add_(axis, idx, src)
def _segment_sum(src, seg, n):
    out = torch.zeros((n,) + src.shape[1:], dtype=src.dtype)
    return out.index_add_(0, seg, src)
def _pad(x, pw):
    flat = tuple(v for pair in reversed(pw) for v in pair)
    return torch.nn.functional.pad(x, flat)

kernel_name = 'gated_mix__sliding_block__dense_activation_silu__prompt'

def setup_inputs():

    _w = (lambda a: (lambda t: t.to(torch.bfloat16) if t.is_floating_point() else t)(torch.as_tensor(a)))
    def _A_setup():
        B, S, D = 1, 2048, 512
        return {
            "x": _w((lambda *s: torch.randn(*s, dtype=torch.bfloat16) * 0.2)(B, S, D)),
            "wqkv": _w((lambda *s: torch.randn(*s, dtype=torch.bfloat16) * 0.2)(D, 3 * D)),
            "wo": _w((lambda *s: torch.randn(*s, dtype=torch.bfloat16) * 0.2)(D, D)),
        }
    _A_in = _A_setup()

    def _B_setup():
        B, S, D, F = 1, 2048, 512, 1376
        return {
            "x": _w((lambda *s: torch.randn(*s, dtype=torch.bfloat16) * 0.2)(B, S, D)),
            "w1": _w((lambda *s: torch.randn(*s, dtype=torch.bfloat16) * 3.2)(D, F) * (D ** -0.5)),
            "w2": _w((lambda *s: torch.randn(*s, dtype=torch.bfloat16) * 3.2)(F, D) * (F ** -0.5)),
        }
    _B_in = _B_setup()

    return {
        "A_x": _A_in["x"],
        "A_wqkv": _A_in["wqkv"],
        "A_wo": _A_in["wo"],
        "B_x": _B_in["x"],
        "B_w1": _B_in["w1"],
        "B_w2": _B_in["w2"],
        "gate_w": _w((lambda *s: torch.randn(*s, dtype=torch.bfloat16) * 0.2)(512) * 16.0),
    }

def reference(A_x, A_wqkv, A_wo, B_x, B_w1, B_w2, gate_w):
    def _A_ref(x, wqkv, wo):
        B, S, D = x.shape
        H = 32; Dh = D // H; W = 256
        qkv = (lambda x, *d: x.permute(*d))((x @ wqkv).reshape(B, S, 3, H, Dh), 2, 0, 3, 1, 4)
        q, k, v = qkv[0], qkv[1], qkv[2]
        scores = torch.einsum("bhqd,bhkd->bhqk", q, k) * (Dh ** -0.5)
        idx = torch.arange(S)
        mask = (idx[:, None] - idx[None, :] >= 0) & (idx[:, None] - idx[None, :] < W)
        scores = torch.where(mask[None, None], scores, -1e9)
        p = _softmax(scores, axis=-1)
        o = torch.einsum("bhqk,bhkd->bhqd", p, v)
        return (lambda x, *d: x.permute(*d))(o, 0, 2, 1, 3).reshape(B, S, D) @ wo

    def _B_ref(x, w1, w2):
        h = torch.einsum("bsd,df->bsf", x, w1)
        h = _silu(h)
        out = torch.einsum("bsf,fd->bsd", h, w2)
        return out

    x = A_x
    g = _sigmoid((x * gate_w).sum(-1, keepdims=True))
    a = _A_ref(x, A_wqkv, A_wo)
    b = _B_ref(x, B_w1, B_w2)
    return g * a + (1 - g) * b
```

```python
import re

TRANS = ("v_exp_f32", "v_log_f32", "v_rcp_f32", "v_rsq_f32", "v_sqrt_f32", "v_sin_f32", "v_cos_f32")

def regs_of(op):
    op = op.strip()
    op = op.lstrip("-").strip("|")
    m = re.fullmatch(r"([vas])\[(\d+):(\d+)\]", op)
    if m:
        return {(m.group(1), i) for i in range(int(m.group(2)), int(m.group(3)) + 1)}
    m = re.fullmatch(r"([vas])(\d+)", op)
    if m:
        return {(m.group(1), int(m.group(2)))}
    if op in ("vcc", "vcc_lo", "vcc_hi"): return {("s", "vcc")}
    if op in ("exec", "exec_lo", "exec_hi"): return {("s", "exec")}
    if op == "m0": return {("s", "m0")}
    return set()

class Ins:
    __slots__ = ("text", "op", "kind", "wr", "rd", "mf", "states")
    def __init__(self, text):
        self.text = text
        t = text.split(";")[0].strip()
        self.wr = set(); self.rd = set(); self.mf = None; self.states = 1
        if not t or t.endswith(":") or t.startswith("."):
            self.op = ""; self.kind = "label" if t.endswith(":") else "dir"; self.states = 0
            return
        parts = t.split(None, 1)
        self.op = op = parts[0]
        rest = parts[1] if len(parts) > 1 else ""
        ops = [o.strip() for o in re.split(r",(?![^\[]*\])", rest)] if rest else []
        mods = ""
        if ops:
            l = ops[-1].split()
            ops[-1] = l[0]; mods = " ".join(l[1:])
        R = regs_of
        if op.startswith("v_mfma"):
            self.kind = "mfma"
            self.mf = dict(D=R(ops[0]), A=R(ops[1]), B=R(ops[2]), C=R(ops[3]), Dt=ops[0], Ct=ops[3])
            self.wr = self.mf["D"]; self.rd = self.mf["A"] | self.mf["B"] | self.mf["C"]
        elif op.startswith("v_"):
            self.kind = "valu"
            base = op.replace("_e32", "").replace("_e64", "").replace("_dpp", "").replace("_sdwa", "")
            self.op = base
            if "row_" in mods or "quad_perm" in mods or op.endswith("_dpp"): self.kind = "valu_dpp"
            self.wr = R(ops[0])
            for o in ops[1:]: self.rd |= R(o)
            if base.startswith("v_permlane"):
                self.wr |= R(ops[1]); self.rd |= R(ops[0])
            if base.startswith(("v_fmac", "v_mac", "v_writelane")) or self.kind == "valu_dpp": self.rd |= R(ops[0])
            if base.startswith("v_cndmask") and len(ops) == 3: self.rd |= {("s", "vcc")}
            if base.startswith(("v_add_co", "v_sub_co", "v_addc", "v_subb")): self.wr |= R(ops[1])
            if base.startswith("v_cmpx"): self.wr |= {("s", "exec")}
        elif op.startswith("ds_"):
            self.kind = "ds"
            if op.startswith("ds_read") or op.startswith("ds_bpermute"):
                self.wr = R(ops[0])
                for o in ops[1:]: self.rd |= R(o)
            else:
                for o in ops: self.rd |= R(o)
        elif op.startswith(("buffer_", "global_")):
            self.kind = "vmem"
            lds = " lds" in (" " + mods)
            if "load" in op and not lds:
                self.wr = R(ops[0])
                for o in ops[1:]: self.rd |= R(o)
            else:
                for o in ops: self.rd |= R(o)
                if lds: self.rd |= {("s", "m0")}; self.kind = "vmem_lds"
                if "store" in op:
                    self.kind = "vmem_st"
                    d = ops[0] if op.startswith("buffer_") else ops[1]
                    self.mf = dict(data=R(d), wide=("x4" in op or "x3" in op))
        elif op.startswith("s_"):
            self.kind = "salu"
            if op == "s_nop":
                self.states = int(ops[0], 0) + 1; self.kind = "nop"
            elif op in ("s_waitcnt", "s_barrier", "s_endpgm", "s_branch", "s_setprio", "s_sleep") or op.startswith(("s_cbranch", "s_cmp", "s_bitcmp")):
                if op.startswith(("s_cmp", "s_bitcmp")):
                    for o in ops: self.rd |= R(o)
                self.kind = "sctl"
            else:
                self.wr = R(ops[0])
                for o in ops[1:]: self.rd |= R(o)
                if "saveexec" in op: self.wr |= {("s", "exec")}
        else:
            raise ValueError("unknown instr " + text)

def is_valu(i): return i.kind in ("valu", "valu_dpp")
def vregs(s): return {r for r in s if r[0] in "va"}
def sregs(s): return {r for r in s if r[0] == "s"}

def need_states(p, c):
    n = 0
    if is_valu(p):
        pv = vregs(p.wr); ps = sregs(p.wr)
        if pv:
            if c.kind == "mfma" and pv & c.rd: n = max(n, 2)
            if c.kind == "valu_dpp" and pv & c.rd: n = max(n, 2)
            if is_valu(c) and c.op.startswith("v_permlane") and pv & (c.rd | c.wr): n = max(n, 2)
            if is_valu(c) and c.op.startswith(("v_readlane", "v_readfirstlane")) and pv & c.rd: n = max(n, 1)
            if p.op in TRANS and is_valu(c) and c.op not in TRANS and pv & (c.rd | c.wr): n = max(n, 1)
            if p.op in TRANS and c.kind in ("vmem", "vmem_st", "vmem_lds", "ds") and pv & c.rd: n = max(n, 1)
        if ps:
            if c.kind.startswith("vmem") and ps & c.rd: n = max(n, 5)
            if is_valu(c) and ps & c.rd: n = max(n, 4 if c.op.startswith(("v_readlane", "v_writelane")) else 2)
            if ("s", "exec") in ps:
                if c.kind == "mfma": n = max(n, 4)
                if c.kind == "valu_dpp": n = max(n, 5)
                if is_valu(c) and c.op.startswith(("v_readlane", "v_readfirstlane", "v_writelane", "v_permlane")): n = max(n, 4)
    if p.kind == "salu" and ("s", "m0") in p.wr and c.kind == "vmem_lds": n = max(n, 1)
    if p.kind == "mfma":
        D = p.mf["D"]
        if c.kind == "mfma":
            if D & (c.mf["A"] | c.mf["B"]): n = max(n, 12)
            if D & c.mf["C"] and c.mf["Ct"] != p.mf["Dt"]: n = max(n, 10)
            if D & c.mf["D"] and c.mf["Ct"] != p.mf["Dt"]: n = max(n, 10)
        elif is_valu(c) or c.kind in ("ds", "vmem", "vmem_st", "vmem_lds"):
            if D & (c.rd | c.wr): n = max(n, 12)
            if is_valu(c) and p.mf["C"] & c.wr: n = max(n, 7)
            if c.kind in ("ds", "vmem") and p.mf["C"] & c.wr: n = max(n, 7)
    if p.kind == "vmem_st" and p.mf["wide"]:
        if p.mf["data"] & c.wr: n = max(n, 2 if is_valu(c) or c.kind == "mfma" else 1)
    return n

class KB:
    def __init__(self):
        self.ins = []
        self.vm = []
        self.lg = []
        self.nops = 0
        self.log = []
    def raw(self, text):
        for l in text.split("\n"):
            l = l.strip()
            if l: self._emit(Ins(l))
    __call__ = raw
    def _emit(self, c):
        if c.kind not in ("label", "dir", "nop"):
            dist = 0; need = 0
            for p in reversed(self.ins[-40:]):
                if p.kind in ("label", "dir"): continue
                n = need_states(p, c)
                if n > dist: need = max(need, n - dist)
                dist += p.states
                if dist >= 20: break
            if need:
                self.nops += need
                self.log.append((len(self.ins), need, c.text))
                while need > 0:
                    k = min(need, 16)
                    self.ins.append(Ins(f"s_nop {k-1}")); need -= k
        self.ins.append(c)
    def label(self, n): self.ins.append(Ins(n + ":"))
    def vmem(self, text, tag=None):
        self.raw(text); self.vm.append(tag)
        assert len(self.vm) <= 200
    def ds(self, text, tag=None):
        self.raw(text); self.lg.append(tag)
    def _need(self, q, tags, mx):
        if not isinstance(tags, (list, set)): tags = [tags]
        idx = max((i for i, t in enumerate(q) if t in tags), default=-1)
        if idx < 0: return None
        n = len(q) - 1 - idx
        return n, idx
    def wait(self, vm=None, lg=None):
        s = []
        if vm is not None:
            r = self._need(self.vm, vm, 63)
            if r:
                n, idx = r
                if n > 63: n = 63; idx = len(self.vm) - 1 - 63
                s.append(f"vmcnt({n})"); self.vm = self.vm[idx + 1:]
        if lg is not None:
            r = self._need(self.lg, lg, 15)
            if r:
                n, idx = r
                if n > 15: n = 15; idx = len(self.lg) - 1 - 15
                s.append(f"lgkmcnt({n})"); self.lg = self.lg[idx + 1:]
        if s: self.raw("s_waitcnt " + " ".join(s))
    def wait_all(self, vm=False, lg=False):
        s = []
        if vm: s.append("vmcnt(0)"); self.vm = []
        if lg: s.append("lgkmcnt(0)"); self.lg = []
        self.raw("s_waitcnt " + " ".join(s))
    def text(self):
        out = []
        for i in self.ins:
            out.append(i.text if i.kind == "label" else "    " + i.text)
        return "\n".join(out)

class Regs:
    def __init__(self, start, limit):
        self.next = start; self.limit = limit; self.map = {}
    def alloc(self, name, n=1, align=1):
        a = (self.next + align - 1) // align * align
        assert a + n <= self.limit, f"out of regs at {name}"
        self.map[name] = (a, n); self.next = a + n
        return a
```

```python
import sys, struct
from collections import deque
from kb import KB, Regs

KNAME = "gated_mix__sliding_block__dense_activation_silu__prompt_kernel"
CFG = dict(
    stamps=False,
    spin=1 << 16,
    T_TAG=97, T_TAGCHK=120,
    T_F1=150, T_P1=160, T_C1=176,
    A_F2=14, A_P2=24, A_C2=31,
    A_HPER=1,
    B_F3=30, B_P3=44, B_C3=60,
    bars3=[10, 16, 22, 28, 34, 40, 46, 52],
    force_fallback=False,
    codepf=True,
)
for a in sys.argv[2:]:
    k, v = a.split("=")
    CFG[k] = eval(v)

def f32(x): return struct.unpack("<I", struct.pack("<f", x))[0]
LOG2E = 1.4426950408889634
WQ, WK, WV, WH, WO, WG, WF, WN, WD = 0x0, 0x200000, 0x400000, 0x600000, 0xC00000, 0xE00000, 0xE40000, 0xF00000, 0xF10000
WS_REC = 0x1000000
BIG = 0x40000000
F1, F2, F3 = WF, WF + 0x20000, WF + 0x40000
U = 4096
XSLOT = [0, 16384, 32768, 49152, 65536, 81920, 0, 16384]
WQSLOT = [24*U, 27*U, 30*U, 33*U, 36*U, 24*U, 27*U, 30*U]
W1SLOT = [9*U, 33*U, 12*U, 36*U, 16*U, 24*U, 20*U, 27*U]
KB_, VB_ = 0, 16384
LDS_BYTES = 163840

k = KB()
SX, SWQ, SW1, SW2, SWO, SWS, SOUT, SDBG, SGATE = 4, 8, 12, 16, 20, 24, 28, 32, 36
S = Regs(40, 100)
def sa(n, c=1, al=1): return S.alloc(n, c, al)
sW = sa("w"); sXcd = sa("xcd"); sJ = sa("j"); sRt = sa("rt"); sCt = sa("ct"); sRot = sa("rot")
sT0 = sa("t0"); sT1 = sa("t1"); sT2 = sa("t2"); sT3 = sa("t3")
sMx = sa("mx"); sMw = sa("mw"); sM3 = sa("m3")
sKx = sa("kx"); sKq = sa("kq"); sK1 = sa("k1")
sQKVst = sa("qkvst", 5)
sScale = sa("scale"); sH0 = sa("h0"); sH2 = sa("h2"); sGst = sa("gst")
sF1 = sa("f1"); sF3 = sa("f3")
sKoff = sa("koff"); sVoff = sa("voff"); sQoff = sa("qoff"); sMk = sa("mk"); sMv = sa("mv"); sOst = sa("ost", 2)
sHld = sa("hld"); sOld = sa("old"); sW3 = sa("w3"); sCnt = sa("cnt"); sRel0 = sa("rel0"); sRel = sa("rel")
sC = sa("c", 2, 2); sLo = sa("lo"); sHi = sa("hi"); sNl2e = sa("nl2e", 2, 2)
sPC = sa("pc", 2, 2)
sStamp = sa("stamp", 4, 2)
NST = 30

V = Regs(1, 256)
def va(n, c=1, al=1): return V.alloc(n, c, al)
vL = va("lane"); vL16 = va("l16"); vSt = va("stamps")
vT = va("tmp", 8, 4)
vX = va("x", 4); vWq = va("wq", 3); vW1 = va("w1", 3)
vXr = va("xr", 8); vWr = va("wr", 3)
vStN = va("stn"); vOwn = va("own")
vP1 = va("p1"); vP2 = va("p2"); vP3 = va("p3")
vKr = va("kr"); vV0 = va("v0"); vV1 = va("v1"); vOnesA = va("onesa")
vW3a = va("w3a"); vW3b = va("w3b"); vA = va("a", 6); vGl = va("gl"); vOut = va("out"); vEx = va("ex", 2)
vTag = va("tag", 4, 4); vPoll = va("poll", 2, 2); vG = va("g", 4, 4); vG3 = va("g3", 2, 2)
vOnes = va("ones", 4, 4)
vQ = va("q", 8, 4)
vCd = va("cd", 16, 4); vCf = va("cf", 16, 4)
accQ = va("accq", 48, 4); accH = va("acch", 48, 4); vWF = va("wf", 36, 4)
print("VGPR high water", V.next, "SGPR", S.next, file=sys.stderr)
aS = accQ; aP = accQ + 32
aK = vWF; aV = vWF + 8
aO = accH
aM = accH + 32
accB = accQ; a3F = vCd
accA = accH + 0

def vr(b, n): return f"v[{b}:{b+n-1}]"
def ar(b, n): return f"a[{b}:{b+n-1}]"
def sr(b, n=4): return f"s[{b}:{b+n-1}]"
def win(base, addr):
    return base + (addr >> 16), addr & 0xFFFF

nstamp = [0]
def stamp(sync=False):
    if not CFG["stamps"]: return
    if sync: k.wait_all(lg=True)
    i = nstamp[0]; nstamp[0] += 1
    assert i < NST
    k(f"s_memtime {sr(sStamp+2*(i%2),2)}")
    if i: k(f"v_writelane_b32 v{vSt}, s{sStamp+2*((i-1)%2)}, {i-1}")

outofline = []

def poll_check(name, vaddr, back_wait_tag):
    k.wait(vm=back_wait_tag)
    k(f"v_cmp_ne_u64 vcc, {vr(vPoll,2)}, {vr(vTag,2)}")
    k(f"s_cbranch_vccnz {name}_slow")
    k.label(f"{name}_back")
    def ool():
        k.label(f"{name}_slow")
        k(f"s_mov_b32 s{sCnt}, {CFG['spin']}")
        k.label(f"{name}_loop")
        k(f"buffer_load_dwordx2 {vr(vPoll,2)}, v{vaddr}, {sr(SWS)}, 0 offen sc1")
        k("s_waitcnt vmcnt(0)")
        k(f"v_cmp_ne_u64 vcc, {vr(vPoll,2)}, {vr(vTag,2)}")
        k(f"s_cbranch_vccz {name}_back")
        k(f"s_sub_u32 s{sCnt}, s{sCnt}, 1")
        k(f"s_cmp_lg_u32 s{sCnt}, 0")
        k(f"s_cbranch_scc1 {name}_loop")
        k(f"s_branch {name}_back")
    outofline.append(ool)

k.label(KNAME)
k("s_cmp_ge_u32 s2, 256")
k("s_cbranch_scc1 L_end")
for srd, off in ((SX, 0), (SWQ, 8), (SGATE, 48), (SWS, 72), (SW1, 32), (SDBG, 64), (SW2, 40), (SWO, 16), (SOUT, 56)):
    k(f"s_load_dwordx2 {sr(srd,2)}, s[0:1], {off}")
if CFG["stamps"]:
    k(f"s_memtime {sr(sStamp,2)}")
k(f"v_lshrrev_b32 v{vT}, 6, v0")
k(f"v_and_b32 v{vL}, 63, v0")
k(f"v_readfirstlane_b32 s{sW}, v{vT}")
k(f"s_and_b32 s{sXcd}, s2, 7")
k(f"s_lshr_b32 s{sJ}, s2, 3")
k(f"s_lshr_b32 s{sT0}, s{sJ}, 4")
k(f"s_lshl_b32 s{sRt}, s{sXcd}, 1")
k(f"s_add_u32 s{sRt}, s{sRt}, s{sT0}")
k(f"s_and_b32 s{sCt}, s{sJ}, 15")
k(f"s_add_u32 s{sRot}, s{sRt}, s{sCt}")
k(f"s_and_b32 s{sRot}, s{sRot}, 7")
for srd, n in ((SX, 2048*1024), (SWQ, 512*3072), (SGATE, 1024), (SWS, WS_REC), (SW1, 512*2752), (SDBG, 256), (SW2, 1376*1024), (SWO, 512*1024), (SOUT, 2048*1024)):
    k(f"s_mov_b32 s{srd+2}, {n:#x}")
    k(f"s_mov_b32 s{srd+3}, 0x20000")
k(f"v_lshlrev_b32 v{vL16}, 4, v{vL}")
t0, t1, t2, t3, t4, t5 = vT, vT+1, vT+2, vT+3, vT+4, vT+5
k(f"s_lshl_b32 s{sT0}, s{sW}, 15")
k(f"v_lshrrev_b32 v{t0}, 3, v{vL}")
k(f"v_lshlrev_b32 v{t0}, 10, v{t0}")
k(f"v_add_u32 v{t0}, s{sT0}, v{t0}")
k(f"v_lshrrev_b32 v{t1}, 4, v{vL}")
k(f"v_xor_b32 v{t1}, v{t1}, v{vL}")
k(f"v_and_b32 v{t1}, 7, v{t1}")
k(f"v_lshlrev_b32 v{t1}, 4, v{t1}")
k(f"v_add_u32 v{vX}, v{t0}, v{t1}")
k(f"v_xor_b32 v{vX+1}, 64, v{vX}")
k(f"v_add_u32 v{vX+1}, 7168, v{vX+1}")
k(f"v_add_u32 v{vX+2}, 14336, v{vX}")
k(f"v_add_u32 v{vX+3}, 14336, v{vX+1}")
k(f"s_lshl_b32 s{sT0}, s{sCt}, 7")
k(f"s_lshl_b32 s{sT1}, s{sCt}, 6")
k(f"s_add_u32 s{sT1}, s{sT1}, 1920")
k(f"s_mul_i32 s{sT2}, s{sCt}, 3")
k(f"s_lshl_b32 s{sT3}, s{sCt}, 1")
k(f"s_add_u32 s{sT3}, s{sT3}, 11")
k(f"s_cmp_lt_u32 s{sCt}, 11")
k(f"s_cselect_b32 s{sT2}, s{sT2}, s{sT3}")
k(f"s_mov_b32 s{sH0}, s{sT2}")
k(f"s_lshl_b32 s{sT2}, s{sT2}, 6")
k(f"s_lshl_b32 s{sT3}, s{sW}, 4")
k(f"v_mov_b32 v{t5}, s{sT1}")
k(f"s_movk_i32 s{sC}, 3072")
k(f"s_movk_i32 s{sC+1}, 2752")
for q in range(3):
    assert all(((64*q+l)*171) >> 11 == (64*q+l)//12 for l in range(64))
    k(f"v_add_u32 v{t0}, {64*q}, v{vL}")
    k(f"v_mul_u32_u24 v{t1}, 171, v{t0}")
    k(f"v_lshrrev_b32 v{t1}, 11, v{t1}")
    k(f"v_mul_u32_u24 v{t2}, 12, v{t1}")
    k(f"v_sub_u32 v{t2}, v{t0}, v{t2}")
    k(f"v_cmp_gt_u32 vcc, 8, v{t2}")
    k(f"v_mov_b32 v{t3}, s{sT0}")
    k(f"v_add_u32 v{t1}, s{sT3}, v{t1}")
    k(f"v_cndmask_b32 v{t3}, v{t5}, v{t3}, vcc")
    k(f"v_lshlrev_b32 v{t2}, 4, v{t2}")
    if q: k(f"v_subrev_u32 v{t2}, {1024*q}, v{t2}")
    k(f"v_mad_u32_u24 v{t4}, v{t1}, s{sC}, v{t2}")
    k(f"v_add_u32 v{vWq+q}, v{t4}, v{t3}")
    k(f"v_mad_u32_u24 v{t4}, v{t1}, s{sC+1}, v{t2}")
    k(f"v_add_u32 v{vW1+q}, s{sT2}, v{t4}")
k(f"s_lshl_b32 s{sMx}, s{sW}, 12")
k(f"s_mul_i32 s{sMw}, s{sW}, 3072")
k(f"s_lshl_b32 s{sT0}, s{sRt}, 17")
k(f"s_lshl_b32 s{sT1}, s{sW}, 15")
k(f"s_add_u32 s{sT1}, s{sT1}, s{sT0}")
k(f"s_lshl_b32 s{sT2}, s{sCt}, 11")
k(f"s_add_u32 s{sT1}, s{sT1}, s{sT2}")
k(f"s_mov_b32 s{sT2}, {WN:#x}")
k(f"v_mov_b32 v{t0}, 0")

def stage_off(s, which):
    k(f"s_add_u32 s{sT3}, s{sRot}, {s}")
    k(f"s_and_b32 s{sT3}, s{sT3}, 7")
    if which == "x":
        k(f"s_lshl_b32 s{sT3}, s{sT3}, 7")
        k(f"s_lshl_b32 s{sKx}, s{sRt}, 17")
        k(f"s_add_u32 s{sKx}, s{sKx}, s{sT3}")
    elif which == "wq": k(f"s_mul_i32 s{sKq}, s{sT3}, {64*3072}")
    else: k(f"s_mul_i32 s{sK1}, s{sT3}, {64*2752}")

def job_x(s):
    jobs = []
    for p in range(4):
        def f(p=p):
            if p == 0:
                stage_off(s, "x")
            k(f"s_add_u32 m0, s{sMx}, {XSLOT[s]}")
            k.vmem(f"buffer_load_dwordx4 v{vX+p}, {sr(SX)}, s{sKx} offen offset:{1024*p} lds", ("x", s))
        jobs.append(f)
    return jobs
def job_w(s, which):
    jobs = []
    slot = (WQSLOT if which == "wq" else W1SLOT)[s]
    for q in range(3):
        def f(q=q):
            if q == 0:
                stage_off(s, which)
            k(f"s_add_u32 m0, s{sMw}, {slot}")
            if which == "wq": k.vmem(f"buffer_load_dwordx4 v{vWq+q}, {sr(SWQ)}, s{sKq} offen offset:{1024*q} lds", ("wq", s))
            else: k.vmem(f"buffer_load_dwordx4 v{vW1+q}, {sr(SW1)}, s{sK1} offen offset:{1024*q} lds", ("w1", s))
        jobs.append(f)
    return jobs
def burst(s, which):
    stage_off(s, which)
    if which == "x":
        k(f"s_add_u32 m0, s{sMx}, {XSLOT[s]}")
        for p in range(4): k.vmem(f"buffer_load_dwordx4 v{vX+p}, {sr(SX)}, s{sKx} offen offset:{1024*p} lds", ("x", s))
    else:
        k(f"s_add_u32 m0, s{sMw}, {WQSLOT[s]}")
        for q in range(3): k.vmem(f"buffer_load_dwordx4 v{vWq+q}, {sr(SWQ)}, s{sKq} offen offset:{1024*q} lds", ("wq", s))

k.wait_all(lg=True)
if CFG["stamps"]: nstamp[0] = 1
gx0, gx1, gw, gt = accH, accH+4, accH+8, accH+12
burst(0, "x"); burst(0, "wq")
k.vmem(f"buffer_load_dwordx2 {vr(vPoll,2)}, v{t0}, {sr(SWS)}, s{sT2} offen sc1", "nonce")
k.vmem(f"buffer_load_dwordx4 {vr(gw,4)}, v{vL16}, {sr(SGATE)}, 0 offen", "gate")
k.vmem(f"buffer_load_dwordx4 {vr(gx0,4)}, v{vL16}, {sr(SX)}, s{sT1} offen", "gate")
k.vmem(f"buffer_load_dwordx4 {vr(gx1,4)}, v{vL16}, {sr(SX)}, s{sT1} offen offset:1024", "gate")
if CFG["codepf"]:
    k(f"s_getpc_b64 {sr(sPC,2)}")
    k.label("L_pc")
    k(f"s_and_b32 s{sT0}, s{sJ}, 3")
    k(f"s_lshl_b32 s{sT0}, s{sT0}, 13")
    k(f"s_lshl_b32 s{sT2}, s{sW}, 11")
    k(f"s_add_u32 s{sT0}, s{sT0}, s{sT2}")
    k(f"v_lshrrev_b32 v{t1}, 2, v{vL}")
    k(f"v_lshlrev_b32 v{t1}, 7, v{t1}")
    k(f"v_add_u32 v{t1}, s{sT0}, v{t1}")
    k(f"v_min_u32 v{t1}, L_end-L_pc, v{t1}")
    k.vmem(f"global_load_dword v{vOnes}, v{t1}, {sr(sPC,2)}", "codepf")
for s in range(1, 5):
    burst(s, "x"); burst(s, "wq")
burst(5, "x")

k(f"v_and_b32 v{t0}, 31, v{vL}")
k(f"v_lshrrev_b32 v{t1}, 5, v{vL}")
k(f"v_lshrrev_b32 v{t2}, 1, v{t0}")
k(f"v_and_b32 v{t2}, 7, v{t2}")
k(f"v_xor_b32 v{t2}, v{t2}, v{t1}")
k(f"v_lshlrev_b32 v{t2}, 4, v{t2}")
k(f"v_lshl_add_u32 v{t2}, v{t0}, 7, v{t2}")
k(f"v_add_u32 v{vXr}, s{sMx}, v{t2}")
for j in range(1, 4): k(f"v_xor_b32 v{vXr+j}, {32*j}, v{vXr}")
for j in range(4): k(f"v_add_u32 v{vXr+4+j}, 0x10000, v{vXr+j}")
k(f"v_bfe_u32 v{t2}, v{vL}, 2, 2")
k(f"v_bfe_u32 v{t3}, v{vL}, 4, 1")
k(f"v_and_b32 v{t4}, 3, v{vL}")
k(f"v_lshlrev_b32 v{t4}, 3, v{t4}")
k(f"v_lshl_add_u32 v{t4}, v{t3}, 5, v{t4}")
k(f"v_lshl_add_u32 v{t5}, v{t1}, 3, v{t2}")
k(f"v_mul_u32_u24 v{t5}, 192, v{t5}")
k(f"v_add_u32 v{vWr}, v{t5}, v{t4}")
k(f"v_add_u32 v{vWr+1}, 0x10000, v{vWr}")
k(f"v_add_u32 v{vWr+2}, 0x20000, v{vWr}")
k(f"s_lshr_b32 s{sT0}, s{sW}, 1")
k(f"s_and_b32 s{sT1}, s{sW}, 1")
k(f"v_lshl_add_u32 v{t5}, v{t1}, 2, v{t2}")
k(f"v_lshl_add_u32 v{t5}, v{t5}, 7, v{t4}")
k(f"v_lshrrev_b32 v{t2}, 1, v{t2}")
k(f"v_xor_b32 v{t2}, s{sT0}, v{t2}")
k(f"v_lshl_add_u32 v{t5}, v{t2}, 6, v{t5}")
k(f"s_lshl_b32 s{sT2}, s{sT0}, 11")
k(f"v_add_u32 v{vA}, s{sT2}, v{t5}")
k(f"v_add_u32 v{vA+1}, 0x10000, v{vA}")
k(f"v_add_u32 v{vA+2}, 0x20000, v{vA}")
for j in range(3): k(f"v_xor_b32 v{vA+3+j}, 64, v{vA+j}")
k(f"s_lshl_b32 s{sM3}, s{sW}, 10")
k(f"s_and_b32 s{sT2}, s{sJ}, 7")
k(f"s_lshl_b32 s{sT2}, s{sT2}, 7")
k(f"s_lshl_b32 s{sT3}, s{sT1}, 13")
k(f"s_add_u32 s{sT3}, s{sT3}, s{sT2}")
k(f"v_lshrrev_b32 v{t5}, 3, v{vL}")
k(f"v_lshlrev_b32 v{t5}, 10, v{t5}")
k(f"v_lshlrev_b32 v{t2}, 2, v{t3}")
k(f"v_xor_b32 v{t2}, v{t2}, v{vL}")
k(f"v_and_b32 v{t2}, 7, v{t2}")
k(f"v_lshl_add_u32 v{t5}, v{t2}, 4, v{t5}")
k(f"v_add_u32 v{t5}, s{sT3}, v{t5}")
k(f"s_mul_i32 s{sT3}, s{sT0}, {43*16384}")
k(f"v_add_u32 v{vW3a}, s{sT3}, v{t5}")
k(f"s_lshl_b32 s{sT3}, s{sT0}, 18")
k(f"v_add_u32 v{vW3b}, s{sT3}, v{t5}")
k(f"s_lshr_b32 s{sT3}, s{sJ}, 3")
k(f"s_lshl_b32 s{sC}, s{sXcd}, 2")
k(f"s_add_u32 s{sT3}, s{sT3}, s{sC}")
k(f"s_lshl_b32 s{sT3}, s{sT3}, 1")
k(f"s_add_u32 s{sT3}, s{sT3}, s{sT1}")
k(f"s_lshl_b32 s{sC}, s{sT3}, 15")
k(f"s_add_u32 s{sC}, s{sC}, s{sT2}")
k(f"s_lshl_b32 s{sC+1}, s{sT0}, 6")
k(f"s_add_u32 s{sC}, s{sC}, s{sC+1}")
k(f"v_lshlrev_b32 v{t5}, 10, v{t0}")
k(f"v_lshl_add_u32 v{t5}, v{t1}, 4, v{t5}")
k(f"v_add_u32 v{vOut}, s{sC}, v{t5}")
k(f"s_lshl_b32 s{sC}, s{sT3}, 11")
k(f"s_add_u32 s{sC}, s{sC}, {WG:#x}")
k(f"v_lshrrev_b32 v{t5}, 1, v{t0}")
k(f"v_lshlrev_b32 v{t5}, 7, v{t5}")
k(f"v_and_b32 v{t2}, 1, v{vL}")
k(f"v_lshl_add_u32 v{t5}, v{t2}, 3, v{t5}")
k(f"v_add_u32 v{vGl}, s{sC}, v{t5}")
k(f"s_mul_i32 s{sHld}, s{sT3}, 86")
k(f"s_mul_i32 s{sC}, s{sT0}, 43")
k(f"s_add_u32 s{sHld}, s{sHld}, s{sC}")
k(f"s_lshl_b32 s{sHld}, s{sHld}, 10")
k(f"s_add_u32 s{sHld}, s{sHld}, {WH:#x}")
k(f"s_lshl_b32 s{sOld}, s{sT3}, 15")
k(f"s_lshl_b32 s{sC}, s{sT0}, 14")
k(f"s_add_u32 s{sOld}, s{sOld}, s{sC}")
k(f"s_add_u32 s{sOld}, s{sOld}, {WO:#x}")
k(f"v_and_b32 v{t2}, 15, v{vL}")
k(f"s_lshr_b32 s{sC}, s{sT3}, 2")
k(f"s_lshl_b32 s{sC}, s{sC}, 13")
k(f"s_and_b32 s{sC+1}, s{sT3}, 3")
k(f"s_lshl_b32 s{sC+1}, s{sC+1}, 7")
k(f"s_add_u32 s{sC}, s{sC}, s{sC+1}")
k(f"s_add_u32 s{sC}, s{sC}, {F2:#x}")
k(f"v_lshlrev_b32 v{t5}, 9, v{t2}")
k(f"v_add_u32 v{vP2}, s{sC}, v{t5}")
k(f"s_lshl_b32 s{sC}, s{sT0}, 16")
k(f"s_lshr_b32 s{sC+1}, s{sT3}, 1")
k(f"s_lshl_b32 s{sC+1}, s{sC+1}, 7")
k(f"s_add_u32 s{sC}, s{sC}, s{sC+1}")
k(f"s_add_u32 s{sC}, s{sC}, {F3:#x}")
k(f"v_lshlrev_b32 v{t5}, 12, v{t2}")
k(f"v_add_u32 v{vP3}, s{sC}, v{t5}")
EXU = 0
k(f"v_add_u32 v{vEx}, s{sMx}, v{vL16}")
k(f"v_xor_b32 v{vEx+1}, 0x2000, v{vEx}")
k(f"s_lshl_b32 s{sC}, s{sRt}, 2")
k(f"s_add_u32 s{sC}, s{sC}, s{sW}")
k(f"s_lshl_b32 s{sC+1}, s{sC}, 10")
k(f"s_lshl_b32 s{sT2}, s{sCt}, 18")
k(f"s_add_u32 s{sQKVst}, s{sT2}, s{sC+1}")
for i in range(1, 4): k(f"s_add_u32 s{sQKVst+i}, s{sQKVst}, {i*65536}")
k(f"s_lshl_b32 s{sT2}, s{sCt}, 17")
k(f"s_add_u32 s{sT2}, s{sT2}, s{sC+1}")
k(f"s_add_u32 s{sQKVst+4}, s{sT2}, {WV:#x}")
k(f"s_mov_b32 s{sScale}, {f32(0.25*LOG2E):#x}")
k(f"s_cmp_lt_u32 s{sCt}, 8")
k(f"s_cselect_b32 s{sScale}, s{sScale}, 1.0")
k(f"v_lshlrev_b32 v{t5}, 16, v{t3}")
k(f"v_lshl_add_u32 v{t5}, v{t1}, 8, v{t5}")
k(f"v_lshl_add_u32 v{vStN}, v{t2}, 4, v{t5}")
k(f"s_lshl_b32 s{sH0}, s{sH0}, 1")
k(f"s_mul_i32 s{sT2}, s{sC}, 86")
k(f"s_add_u32 s{sH0}, s{sH0}, s{sT2}")
k(f"s_lshl_b32 s{sH0}, s{sH0}, 10")
k(f"s_add_u32 s{sH0}, s{sH0}, {WH:#x}")
k(f"s_add_u32 s{sH2}, s{sH0}, 4096")
k(f"s_cmp_lt_u32 s{sCt}, 11")
k(f"s_cselect_b32 s{sH2}, s{sH2}, {BIG:#x}")
k(f"s_lshl_b32 s{sGst}, s{sC}, 11")
k(f"s_lshl_b32 s{sT2}, s{sCt}, 7")
k(f"s_add_u32 s{sGst}, s{sGst}, s{sT2}")
k(f"s_add_u32 s{sGst}, s{sGst}, {WG:#x}")
k(f"s_lshl_b32 s{sF1}, s{sRt}, 4")
k(f"s_add_u32 s{sF1}, s{sF1}, s{sCt}")
k(f"s_lshl_b32 s{sF1}, s{sF1}, 2")
k(f"s_add_u32 s{sF1}, s{sF1}, s{sW}")
k(f"s_lshl_b32 s{sF1}, s{sF1}, 7")
k(f"s_add_u32 s{sF1}, s{sF1}, {F1:#x}")
k(f"s_lshl_b32 s{sF3}, s{sJ}, 3")
k(f"s_add_u32 s{sF3}, s{sF3}, s{sXcd}")
k(f"s_lshl_b32 s{sF3}, s{sF3}, 2")
k(f"s_add_u32 s{sF3}, s{sF3}, s{sW}")
k(f"s_lshl_b32 s{sF3}, s{sF3}, 7")
k(f"s_add_u32 s{sF3}, s{sF3}, {F3:#x}")
k(f"v_mov_b32 v{t5}, {BIG:#x}")
k(f"v_cmp_eq_u32 vcc, 63, v{vL}")
k(f"v_cndmask_b32 v{vOwn}, v{t5}, 0, vcc")
k(f"s_lshl_b32 s{sC}, s{sJ}, 6")
k(f"s_lshl_b32 s{sC+1}, s{sXcd}, 3")
k(f"s_add_u32 s{sC}, s{sC}, s{sC+1}")
k(f"s_lshl_b32 s{sT2}, s{sW}, 1")
k(f"s_add_u32 s{sQoff}, s{sC}, s{sT2}")
k(f"s_lshl_b32 s{sQoff}, s{sQoff}, 10")
k(f"s_lshl_b32 s{sT3}, s{sW}, 2")
k(f"s_add_u32 s{sKoff}, s{sC}, s{sT3}")
k(f"s_lshl_b32 s{sKoff}, s{sKoff}, 10")
k(f"s_add_u32 s{sKoff}, s{sKoff}, {WK - 8192:#x}")
k(f"s_add_u32 s{sVoff}, s{sKoff}, {WV - WK:#x}")
k(f"s_add_u32 s{sT3}, s{sT3}, s{sC+1}")
k(f"s_cmp_ge_u32 s{sT3}, 8")
k(f"s_cselect_b32 s{sKoff}, s{sKoff}, {BIG:#x}")
k(f"s_cselect_b32 s{sVoff}, s{sVoff}, {BIG:#x}")
k(f"s_cselect_b32 s{sT3}, 0x3f803f80, 0")
k(f"s_mov_b32 s{sLo}, s{sT3}")
k(f"s_add_u32 s{sMk}, s{sMx}, {KB_}")
k(f"s_mul_i32 s{sMv}, s{sW}, 4160")
k(f"s_add_u32 s{sMv}, s{sMv}, {VB_}")
k(f"v_and_b32 v{t5}, 3, v{vL}")
k(f"v_mul_u32_u24 v{t5}, 1040, v{t5}")
k(f"v_add_u32 v{t5}, s{sMv}, v{t5}")
k(f"v_add_u32 v{vOnesA}, 1024, v{t5}")
k(f"s_lshl_b32 s{sT3}, s{sW}, 11")
k(f"v_add_u32 v{vKr}, s{sT3}, v{vL16}")
k(f"s_mul_i32 s{sT3}, s{sW}, 2080")
k(f"v_lshlrev_b32 v{t5}, 8, v{t1}")
k(f"v_lshl_add_u32 v{t5}, v{t2}, 4, v{t5}")
k(f"v_add_u32 v{t4}, 512, v{t5}")
k(f"v_cmp_eq_u32 vcc, 0, v{t3}")
k(f"v_mov_b32 v{vV1}, 1024")
k(f"v_cndmask_b32 v{vV0}, v{vV1}, v{t5}, vcc")
k(f"v_cndmask_b32 v{vV1}, v{vV1}, v{t4}, vcc")
k(f"v_add_u32 v{vV0}, s{sT3}, v{vV0}")
k(f"v_add_u32 v{vV1}, s{sT3}, v{vV1}")
k(f"s_add_u32 s{sT3}, s{sC+1}, s{sT2}")
k(f"s_sub_u32 s{sRel0}, 8, s{sT3}")
k(f"s_lshl_b32 s{sT3}, s{sT3}, 5")
k(f"s_add_u32 s{sT3}, s{sT3}, s{sJ}")
k(f"s_lshl_b32 s{sT3}, s{sT3}, 10")
k(f"s_add_u32 s{sOst}, s{sT3}, {WO:#x}")
k(f"s_add_u32 s{sOst+1}, s{sOst}, 32768")
k(f"s_lshl_b32 s{sC}, s{sXcd}, 1")
k(f"s_lshr_b32 s{sC+1}, s{sW}, 1")
k(f"s_add_u32 s{sC+1}, s{sC+1}, s{sC}")
k(f"s_lshl_b32 s{sC+1}, s{sC+1}, 6")
k(f"s_and_b32 s{sT3}, s{sJ}, 28")
k(f"s_add_u32 s{sC+1}, s{sC+1}, s{sT3}")
k(f"s_and_b32 s{sT2}, s{sT2}, 3")
k(f"s_add_u32 s{sC+1}, s{sC+1}, s{sT2}")
k(f"v_and_b32 v{t5}, 1, v{vL}")
k(f"v_add_u32 v{t5}, s{sC+1}, v{t5}")
k(f"s_add_u32 s{sC}, s{sC}, s{sW}")
k(f"s_sub_u32 s{sC}, s{sC}, 2")
k(f"s_lshl_b32 s{sC}, s{sC}, 6")
k(f"s_add_u32 s{sT2}, s{sC}, s{sT3}")
k(f"s_add_u32 s{sT2}, s{sT2}, 32")
k(f"s_lshl_b32 s{sT3}, s{sJ}, 1")
k(f"s_and_b32 s{sT3}, s{sT3}, 60")
k(f"s_add_u32 s{sT3}, s{sT3}, s{sC}")
k(f"s_sub_u32 s{sT3}, s{sT3}, 4")
k(f"v_add_u32 v{t4}, s{sT2}, v{vL}")
k(f"v_add_u32 v{t2}, s{sT3}, v{vL}")
k(f"v_cmp_gt_u32 vcc, 4, v{vL}")
k(f"s_cmp_lg_u32 s{sLo}, 0")
k(f"s_cselect_b32 s{sT2}, 8, 0")
k(f"v_cndmask_b32 v{t4}, v{t2}, v{t4}, vcc")
k(f"v_cmp_gt_u32 vcc, s{sT2}, v{vL}")
k(f"v_cndmask_b32 v{t4}, v{t5}, v{t4}, vcc")
k(f"v_lshlrev_b32 v{t4}, 7, v{t4}")
k(f"v_add_u32 v{vP1}, {F1:#x}, v{t4}")
k(f"v_lshlrev_b32 v{t5}, 2, v{t1}")
k(f"v_sub_u32 v{t5}, v{t0}, v{t5}")
k(f"v_mov_b32 v{t4}, {f32(-1e30):#x}")
for r in range(16):
    key = 8*(r//4) + r % 4
    k(f"v_cmp_le_i32 vcc, {key}, v{t5}")
    k(f"s_nop 1")
    k(f"v_cndmask_b32 v{vCd+r}, v{t4}, 0, vcc")
    k(f"v_cndmask_b32 v{vCf+r}, 0, v{t4}, vcc")
k(f"s_mov_b32 s{sNl2e}, {f32(-LOG2E):#x}")
k(f"s_mov_b32 s{sNl2e+1}, {f32(-LOG2E):#x}")
k.wait(vm="nonce")
k(f"v_add_u32 v{vTag}, 1, v{vPoll}")
k(f"v_mov_b32 v{vTag+1}, v{vPoll+1}")
k(f"v_mov_b32 v{vTag+2}, 1")
k(f"v_mov_b32 v{vTag+3}, 0")
k(f"s_or_b32 s{sT2}, s2, s{sW}")
k(f"s_cmp_eq_u32 s{sT2}, 0")
k(f"s_cselect_b32 s{sT2}, 0, {BIG:#x}")
k(f"s_add_u32 s{sT3}, s{sT2}, {WN:#x}")
k.vmem(f"buffer_store_dwordx4 {vr(vTag,4)}, v{vOwn}, {sr(SDBG)}, s{sT2} offen sc1", "tagst")
k.vmem(f"buffer_store_dwordx2 {vr(vTag,2)}, v{vOwn}, {sr(SWS)}, s{sT3} offen sc1", "tagst")
k.wait(vm=["gate", "codepf"])
gwf = gt
for i in range(4):
    k(f"v_lshlrev_b32 v{gwf+2*i}, 16, v{gw+i}")
    k(f"v_and_b32 v{gwf+2*i+1}, 0xffff0000, v{gw+i}")
z = [gt+8, gt+9]; p = gt+10
for row, gx in enumerate((gx0, gx1)):
    for i in range(4):
        k(f"v_lshlrev_b32 v{p+2*i}, 16, v{gx+i}")
        k(f"v_and_b32 v{p+2*i+1}, 0xffff0000, v{gx+i}")
    for i in range(8): k(f"v_mul_f32 v{p+i}, v{p+i}, v{gwf+i}")
    for i in range(4): k(f"v_cvt_pk_bf16_f32 v{gx+i}, v{p+2*i}, v{p+2*i+1}")
    for i in range(4):
        k(f"v_lshlrev_b32 v{p+2*i}, 16, v{gx+i}")
        k(f"v_and_b32 v{p+2*i+1}, 0xffff0000, v{gx+i}")
    for i in range(4): k(f"v_add_f32 v{p+i}, v{p+i}, v{p+4+i}")
    k(f"v_add_f32 v{p}, v{p}, v{p+2}")
    k(f"v_add_f32 v{p+1}, v{p+1}, v{p+3}")
    k(f"v_add_f32 v{z[row]}, v{p}, v{p+1}")
for m in ("row_shr:1 row_mask:0xf bank_mask:0xf bound_ctrl:0", "row_shr:2 row_mask:0xf bank_mask:0xf bound_ctrl:0",
          "row_shr:4 row_mask:0xf bank_mask:0xf bound_ctrl:0", "row_shr:8 row_mask:0xf bank_mask:0xf bound_ctrl:0",
          "row_bcast:15 row_mask:0xa bank_mask:0xf", "row_bcast:31 row_mask:0xc bank_mask:0xf"):
    for row in range(2): k(f"v_add_f32_dpp v{z[row]}, v{z[row]}, v{z[row]} {m}")
k(f"v_cvt_pk_bf16_f32 v{p}, v{z[0]}, v{z[1]}")
k(f"v_lshlrev_b32 v{z[0]}, 16, v{p}")
k(f"v_and_b32 v{z[1]}, 0xffff0000, v{p}")
for row in range(2): k(f"v_mul_f32 v{z[row]}, s{sNl2e}, v{z[row]}")
for row in range(2): k(f"v_exp_f32 v{z[row]}, v{z[row]}")
for row in range(2): k(f"v_add_f32 v{z[row]}, 1.0, v{z[row]}")
for row in range(2): k(f"v_rcp_f32 v{z[row]}, v{z[row]}")
k(f"v_cvt_pk_bf16_f32 v{p}, v{z[0]}, v{z[1]}")
k(f"v_lshlrev_b32 v{vG}, 16, v{p}")
k(f"v_and_b32 v{vG+2}, 0xffff0000, v{p}")
k(f"v_sub_f32 v{z[0]}, 1.0, v{vG}")
k(f"v_sub_f32 v{z[1]}, 1.0, v{vG+2}")
k(f"v_cvt_pk_bf16_f32 v{p}, v{z[0]}, v{z[1]}")
k(f"v_lshlrev_b32 v{vG+1}, 16, v{p}")
k(f"v_and_b32 v{vG+3}, 0xffff0000, v{p}")
for i in range(4): k(f"v_mov_b32 v{vOnes+i}, s{sLo}")
k(f"s_mov_b32 s{sLo}, {f32(2.0**-60):#x}")
k(f"s_mov_b32 s{sHi}, {f32(2.0**60):#x}")
k(f"s_mov_b32 s{sW3}, 0")

def tb(S_): return 12*S_ - 6
free_p1 = {39: 0, 15: tb(5), 19: tb(6), 23: tb(7)}
for u in (30, 31, 32): free_p1[u] = tb(9)
for s in range(6):
    for u in range(3): free_p1[W1SLOT[s]//U + u] = tb(8+s+2)
units_p1 = sorted(free_p1, key=lambda u: free_p1[u])
units_att = [W1SLOT[6]//U + u for u in range(3)] + [W1SLOT[7]//U + u for u in range(3)]
units_p3 = list(range(4, 9))
w3_unit = units_p1 + units_att + units_p3
NPRE = len(units_p1) + len(units_att)
bars3 = CFG["bars3"]
w3_time3 = {}
nxt = len(w3_unit); src = 0
for j in range(NPRE, nxt): w3_time3[j] = 0
while nxt < 59:
    b = min(x for x in bars3 if x >= src + 1)
    w3_unit.append(w3_unit[src]); w3_time3[nxt] = b; nxt += 1; src += 1
print("w3 units", w3_unit, "times", w3_time3, file=sys.stderr)

def job_w3(j):
    def f():
        if j == 43: k(f"s_mov_b32 s{sW3}, 0")
        k(f"s_add_u32 m0, s{sM3}, {w3_unit[j]*U}")
        if j < 43: k.vmem(f"buffer_load_dwordx4 v{vW3a}, {sr(SW2)}, s{sW3} offen lds", ("w3", j))
        else: k.vmem(f"buffer_load_dwordx4 v{vW3b}, {sr(SWO)}, s{sW3} offen lds", ("w3", j))
        k(f"s_add_u32 s{sW3}, s{sW3}, 16384")
    return f

mem = deque()
for t, js in ((10, job_x(6)), (tb(2), job_w(5, "wq")), (22, job_x(7)), (tb(3), job_w(6, "wq")), (tb(4), job_w(7, "wq")),
              (tb(4), job_w(0, "w1")), (tb(5), job_w(1, "w1")), (tb(5), job_w(2, "w1")), (tb(6), job_w(3, "w1")), (tb(6), job_w(4, "w1")),
              (tb(7), job_w(5, "w1")), (tb(7), job_w(6, "w1")), (tb(8), job_w(7, "w1"))):
    for j in js: mem.append((t, j))
w3q = deque((max(free_p1[u], 93), job_w3(j)) for j, u in enumerate(units_p1))

def p1_reads(g, b):
    S_ = g // 4
    slot = WQSLOT[S_] if S_ < 8 else W1SLOT[S_-8]
    if b == 0 and g < 32:
        a = XSLOT[S_]
        k.ds(f"ds_read_b128 {ar(4*g,4)}, v{vXr + 4*(a >> 16) + g % 4} offset:{a & 0xFFFF}", ("xf", g))
    for e in range(2):
        r, o = win(vWr, slot + (g % 4)*3072 + e*768 + b*64)
        d = vWF + (g % 3)*12 + 4*b + 2*e
        k.ds(f"ds_read_b64_tr_b16 {vr(d,2)}, v{r} offset:{o}", ("wf", g, b))
def stage_tags(S_): return [("x", S_), ("wq", S_)] if S_ < 8 else [("w1", S_-8)]

valu = deque()
for b in range(3):
    a = accQ + 16*b
    for h in range(2):
        if b < 2:
            for i in range(8): valu.append(f"v_mul_f32 v{a+8*h+i}, s{sScale}, v{a+8*h+i}")
        for i in range(4): valu.append(f"v_cvt_pk_bf16_f32 v{a+8*h+i}, v{a+8*h+2*i}, v{a+8*h+2*i+1}")
        if b < 2: valu.append(("st", f"buffer_store_dwordx4 {vr(a+8*h,4)}, v{vL16}, {sr(SWS)}, s{sQKVst+2*b+h} offen sc1"))
        else: valu.append(("st", f"buffer_store_dwordx4 {vr(a+8*h,4)}, v{vStN}, {sr(SWS)}, s{sQKVst+4} offen offset:{512*h} sc1"))
valu.append(("st", f"buffer_store_dwordx4 {vr(vG,4)}, v{vOwn}, {sr(SWS)}, s{sGst} offen sc1"))

def tag_check():
    k.wait(vm="tagld")
    k(f"v_cmp_eq_u32 vcc, 0, v{vTag+2}")
    k("s_cbranch_vccnz TAG_slow")
    k.label("TAG_back")
    def ool():
        k.label("TAG_slow")
        k(f"s_mov_b32 s{sCnt}, {CFG['spin']}")
        k.label("TAG_loop")
        k(f"buffer_load_dwordx4 {vr(vTag,4)}, off, {sr(SDBG)}, 0 sc1")
        k("s_waitcnt vmcnt(0)")
        k(f"v_cmp_eq_u32 vcc, 0, v{vTag+2}")
        k("s_cbranch_vccz TAG_back")
        k(f"s_sub_u32 s{sCnt}, s{sCnt}, 1")
        k(f"s_cmp_lg_u32 s{sCnt}, 0")
        k("s_cbranch_scc1 TAG_loop")
        k("s_branch TAG_back")
    outofline.append(ool)

kvq = deque()
def kv_jobs():
    def fk(i):
        def f():
            if i == 0: k(f"s_mov_b32 m0, s{sMk}")
            k.vmem(f"buffer_load_dwordx4 v{vL16}, {sr(SWS)}, s{sKoff} offen offset:{1024*i} sc1 lds", "kv")
        return f
    def fv(i):
        def f():
            k(f"s_add_u32 m0, s{sMv}, {16*i}")
            k.vmem(f"buffer_load_dwordx4 v{vL16}, {sr(SWS)}, s{sVoff} offen offset:{1024*i} sc1 lds", "kv")
        return f
    def fq(q):
        def f(): k.vmem(f"buffer_load_dwordx4 {vr(vQ+4*q,4)}, v{vL16}, {sr(SWS)}, s{sQoff} offen offset:{1024*q} sc1", "kv")
        return f
    return [fk(i) for i in range(4)] + [fq(0), fq(1)] + [fv(i) for i in range(4)]

stamp()
k.wait(vm=stage_tags(0))
k("s_barrier")
stamp(True)
for g in range(2):
    for b in range(3): p1_reads(g, b)
k(".p2align 3")
for g in range(64):
    for b in range(3):
        t = 3*g + b
        acc = (accQ if g < 32 else accH) + 16*b
        k.wait(lg=[("wf", g, b), ("xf", g)])
        wf = vr(vWF + (g % 3)*12 + 4*b, 4); xf = ar(4*(g % 32), 4)
        c = "0" if g % 32 == 0 else vr(acc, 16)
        if g < 32 and b == 2: k(f"v_mfma_f32_32x32x16_bf16 {vr(acc,16)}, {xf}, {wf}, {c}")
        else: k(f"v_mfma_f32_32x32x16_bf16 {vr(acc,16)}, {wf}, {xf}, {c}")
        if b == 0 and (g + 2) % 4 == 0 and g + 2 < 64:
            k.wait(vm=stage_tags((g + 2)//4))
            k("s_barrier")
        if g + 2 < 64: p1_reads(g + 2, b)
        did = False
        if t == CFG["T_TAG"]:
            k.vmem(f"buffer_load_dwordx4 {vr(vTag,4)}, off, {sr(SDBG)}, 0 sc1", "tagld"); did = True
        elif t == CFG["T_TAGCHK"]:
            tag_check(); did = True
        elif t == CFG["T_F1"]:
            assert not valu
            k.wait(vm="st1")
            k.vmem(f"buffer_store_dwordx2 {vr(vTag,2)}, v{vOwn}, {sr(SWS)}, s{sF1} offen sc1", "f1"); did = True
        elif t == CFG["T_P1"]:
            k.vmem(f"buffer_load_dwordx2 {vr(vPoll,2)}, v{vP1}, {sr(SWS)}, 0 offen sc1", "p1"); did = True
        elif t == CFG["T_C1"]:
            poll_check("P1", vP1, "p1"); kvq.extend(kv_jobs()); did = True
            k.ds(f"ds_write_b128 v{vOnesA}, {vr(vOnes,4)}", "ones")
        if not did and mem and mem[0][0] <= t:
            mem.popleft()[1](); did = True
        if not did and kvq:
            kvq.popleft()(); did = True
        if not did and w3q and w3q[0][0] <= t and not (CFG["T_P1"] - 6 <= t <= CFG["T_C1"]) and t % 2 == 0:
            w3q.popleft()[1](); did = True
        if t >= 98:
            n = 0
            while valu and n < 3:
                it = valu[0]
                if isinstance(it, tuple):
                    if did: break
                    k.vmem(it[1], "st1"); did = True; n += 1
                else: k(it); n += 1
                valu.popleft()
        if t == 95: stamp()
assert not mem and not valu
while kvq: kvq.popleft()()
stamp()
tmp = accQ
for b in range(3):
    a = accH + 16*b
    for i in range(8): k(f"v_pk_mul_f32 {vr(tmp+2*i,2)}, {vr(a+2*i,2)}, {sr(sNl2e,2)}")
    for i in range(16): k(f"v_exp_f32 v{tmp+i}, v{tmp+i}")
    for i in range(8): k(f"v_pk_add_f32 {vr(tmp+2*i,2)}, {vr(tmp+2*i,2)}, 1.0 op_sel_hi:[1,0]")
    for i in range(16): k(f"v_rcp_f32 v{tmp+i}, v{tmp+i}")
    for i in range(8): k(f"v_pk_mul_f32 {vr(a+2*i,2)}, {vr(a+2*i,2)}, {vr(tmp+2*i,2)}")
    for h in range(2):
        for i in range(4): k(f"v_cvt_pk_bf16_f32 v{a+8*h+i}, v{a+8*h+2*i}, v{a+8*h+2*i+1}")
        if b < 2: k.vmem(f"buffer_store_dwordx4 {vr(a+8*h,4)}, v{vL16}, {sr(SWS)}, s{sH0} offen offset:{2048*b+1024*h} sc1", "st2")
        else: k.vmem(f"buffer_store_dwordx4 {vr(a+8*h,4)}, v{vL16}, {sr(SWS)}, s{sH2} offen offset:{1024*h} sc1", "st2")
stamp()

k.wait(vm="kv", lg="ones")
k("s_barrier")
stamp(True)
tiles = [(0, 0)]
for i in range(1, 9): tiles += [(0, i), (1, i)]
tiles.append((1, 9))
def rdK(i): k.ds(f"ds_read_b128 {vr(aK+4*(i%2),4)}, v{vKr} offset:{KB_+1024*i}", ("k", i))
def rdV(i, t): k.ds(f"ds_read_b128 {vr(aV+8*(i%3)+4*t,4)}, v{vV0+t} offset:{VB_+1040*i}", ("v", i, t))
def mS(n):
    q, i = tiles[n]
    c = vr(vCf, 16) if i == q else vr(vCd, 16) if i == q + 8 else "0"
    k.wait(lg=("k", i))
    k(f"v_mfma_f32_32x32x16_bf16 {vr(aS+16*(n%2),16)}, {vr(aK+4*(i%2),4)}, {vr(vQ+4*q,4)}, {c}")
def mPV(n, t):
    q, i = tiles[n]
    o = vr(aO+16*q, 16)
    k.wait(lg=("v", i, t))
    k(f"v_mfma_f32_32x32x16_bf16 {o}, {vr(aV+8*(i%3)+4*t,4)}, {vr(aP+8*(n%2)+4*t,4)}, {'0' if (i == q and t == 0) else o}")
attq = deque(list(w3q) + [(0, job_w3(len(units_p1)+j)) for j in range(len(units_att))])
hq = deque()
def job_h(j):
    def f():
        if j and j % 4 == 0: k(f"s_add_u32 s{sHld}, s{sHld}, 4096")
        k.vmem(f"buffer_load_dwordx4 {ar(4*j,4)}, v{vL16}, {sr(SWS)}, s{sHld} offen offset:{1024*(j%4)} sc1", ("h", j))
    return f
gapn = [0]
def att_gap(ds):
    t = gapn[0]; gapn[0] += 1
    for f in ds: f()
    if t == CFG["A_F2"]:
        k.wait(vm="st2")
        k(f"s_add_u32 s{sF1}, s{sF1}, {F2-F1:#x}")
        k.vmem(f"buffer_store_dwordx2 {vr(vTag,2)}, v{vOwn}, {sr(SWS)}, s{sF1} offen sc1", "f2")
    elif t == CFG["A_P2"]:
        assert not attq
        k.vmem(f"buffer_load_dwordx2 {vr(vPoll,2)}, v{vP2}, {sr(SWS)}, 0 offen sc1", "p2")
    elif t == CFG["A_C2"]:
        poll_check("P2", vP2, "p2")
        hq.extend(job_h(j) for j in range(43))
        k.vmem(f"buffer_load_dwordx2 {vr(vG3,2)}, v{vGl}, {sr(SWS)}, 0 offen sc1", "g3")
    elif attq: attq.popleft()[1]()
    else:
        for _ in range(CFG["A_HPER"]):
            if hq: hq.popleft()()
rdK(0); rdK(1); rdV(0, 0); rdV(0, 1)
mS(0)
k(".p2align 3")
for n in range(18):
    sb = aS + 16*(n % 2); pb = aP + 8*(n % 2)
    q, i = tiles[n]
    dsA, dsB = [], []
    if n + 1 < 18:
        qn, in_ = tiles[n + 1]
        if qn == 1 and in_ + 2 <= 9: dsA.append(lambda a=in_: rdK(a + 2))
        if n + 1 == 1: pass
    if n == 0: dsB += [lambda: rdV(1, 0), lambda: rdV(1, 1)]
    if q == 0 and i >= 1 and i + 1 <= 9: dsB += [lambda a=i: rdV(a + 1, 0), lambda a=i: rdV(a + 1, 1)]
    if n + 1 < 18:
        mS(n + 1)
        if n == 0: dsA.append(lambda: rdK(2))
        att_gap(dsA)
    for r in range(4): k(f"v_exp_f32 v{sb+r}, v{sb+r}")
    if n >= 1: mPV(n - 1, 0); att_gap([])
    for r in range(4, 8): k(f"v_exp_f32 v{sb+r}, v{sb+r}")
    if n >= 1: mPV(n - 1, 1)
    if n >= 1 or dsB: att_gap(dsB)
    for r in range(8, 16): k(f"v_exp_f32 v{sb+r}, v{sb+r}")
    for r in range(8): k(f"v_cvt_pk_bf16_f32 v{pb+r}, v{sb+2*r}, v{sb+2*r+1}")
mPV(17, 0); mPV(17, 1)
print("attention gaps", gapn[0], "h loads left", len(hq), file=sys.stderr)
k(f"v_cmp_gt_f32 vcc, s{sLo}, v{aO+8}")
k(f"v_cmp_nge_f32 {sr(sC,2)}, s{sHi}, v{aO+8}")
k(f"s_or_b64 {sr(sC,2)}, {sr(sC,2)}, vcc")
k(f"v_cmp_gt_f32 vcc, s{sLo}, v{aO+24}")
k(f"s_or_b64 {sr(sC,2)}, {sr(sC,2)}, vcc")
k(f"v_cmp_nge_f32 vcc, s{sHi}, v{aO+24}")
k(f"s_or_b64 vcc, {sr(sC,2)}, vcc")
if CFG["force_fallback"]: k("s_branch FB")
else: k("s_cbranch_scc1 FB")
k.label("FB_back")
for q in range(2):
    o = aO + 16*q
    k(f"v_rcp_f32 v{o+8}, v{o+8}")
    for i in range(8): k(f"v_mul_f32 v{o+i}, v{o+i}, v{o+8}")
    for i in range(4): k(f"v_cvt_pk_bf16_f32 v{o+i}, v{o+2*i}, v{o+2*i+1}")
    k.vmem(f"buffer_store_dwordx4 {vr(o,4)}, v{vL16}, {sr(SWS)}, s{sOst+q} offen sc1", "st3")

def fallback():
    vm_, vka, vva, vvb = vT, vT+1, vT+2, vT+3
    k.label("FB")
    k("s_nop 15")
    for q in range(2):
        o = aO + 16*q
        for ps in range(2):
            L = f"FB{q}{ps}"
            k(f"s_sub_i32 s{sRel}, s{sRel0}, {q}")
            k(f"s_max_i32 s{sRel}, s{sRel}, 0")
            if ps == 0: k(f"v_mov_b32 v{vm_}, {f32(-3e38):#x}")
            else:
                for r in range(16): k(f"v_mov_b32 v{o+r}, 0")
            k.label(L + "_loop")
            k(f"s_add_u32 s{sT0}, s{sRel}, {q}")
            k(f"s_lshl_b32 s{sT1}, s{sT0}, 10")
            k(f"v_add_u32 v{vka}, s{sT1}, v{vKr}")
            k(f"ds_read_b128 {vr(aK,4)}, v{vka} offset:{KB_}")
            if ps == 1:
                k(f"s_mul_i32 s{sT1}, s{sT0}, 1040")
                k(f"v_add_u32 v{vva}, s{sT1}, v{vV0}")
                k(f"v_add_u32 v{vvb}, s{sT1}, v{vV1}")
                k(f"ds_read_b128 {vr(aV,4)}, v{vva} offset:{VB_}")
                k(f"ds_read_b128 {vr(aV+4,4)}, v{vvb} offset:{VB_}")
            k(f"s_cmp_eq_u32 s{sRel}, 0")
            k(f"s_cbranch_scc1 {L}_far")
            k(f"s_cmp_eq_u32 s{sRel}, 8")
            k(f"s_cbranch_scc1 {L}_diag")
            k("s_waitcnt lgkmcnt(0)")
            k(f"v_mfma_f32_32x32x16_bf16 {vr(aS,16)}, {vr(aK,4)}, {vr(vQ+4*q,4)}, 0")
            k(f"s_branch {L}_go")
            k.label(L + "_far")
            k("s_waitcnt lgkmcnt(0)")
            k(f"v_mfma_f32_32x32x16_bf16 {vr(aS,16)}, {vr(aK,4)}, {vr(vQ+4*q,4)}, {vr(vCf,16)}")
            k(f"s_branch {L}_go")
            k.label(L + "_diag")
            k("s_waitcnt lgkmcnt(0)")
            k(f"v_mfma_f32_32x32x16_bf16 {vr(aS,16)}, {vr(aK,4)}, {vr(vQ+4*q,4)}, {vr(vCd,16)}")
            k.label(L + "_go")
            k("s_nop 15")
            if ps == 0:
                for r in range(8): k(f"v_max3_f32 v{vm_}, v{aS+2*r}, v{aS+2*r+1}, v{vm_}")
            else:
                for r in range(16): k(f"v_sub_f32 v{aS+r}, v{aS+r}, v{vm_}")
                for r in range(16): k(f"v_exp_f32 v{aS+r}, v{aS+r}")
                for r in range(8): k(f"v_cvt_pk_bf16_f32 v{aP+r}, v{aS+2*r}, v{aS+2*r+1}")
                k(f"v_mfma_f32_32x32x16_bf16 {vr(o,16)}, {vr(aV,4)}, {vr(aP,4)}, {vr(o,16)}")
                k(f"v_mfma_f32_32x32x16_bf16 {vr(o,16)}, {vr(aV+4,4)}, {vr(aP+4,4)}, {vr(o,16)}")
                k("s_nop 15")
            k(f"s_add_u32 s{sRel}, s{sRel}, 1")
            k(f"s_cmp_le_u32 s{sRel}, 8")
            k(f"s_cbranch_scc1 {L}_loop")
            if ps == 0:
                k(f"v_mov_b32 v{vka}, v{vm_}")
                k(f"v_permlane32_swap_b32 v{vm_}, v{vka}")
                k(f"v_max_f32 v{vm_}, v{vm_}, v{vka}")
    k("s_nop 15")
    k("s_branch FB_back")
outofline.append(fallback)
stamp()

PD = 3
def p3_reads(j, lb):
    for e in range(2):
        r, o = win(vA + 3*lb, w3_unit[j]*U + e*1024)
        k.ds(f"ds_read_b64_tr_b16 {vr(a3F + (j % 4)*8 + 4*lb + 2*e, 2)}, v{r} offset:{o}", ("af", j, lb))
def job_o(j):
    def f():
        if j and j % 4 == 0: k(f"s_add_u32 s{sOld}, s{sOld}, 4096")
        k.vmem(f"buffer_load_dwordx4 {ar(172+4*j,4)}, v{vL16}, {sr(SWS)}, s{sOld} offen offset:{1024*(j%4)} sc1", ("o", j))
    return f
k.wait(vm=[("w3", j) for j in range(NPRE)])
k.wait_all(lg=True)
k("s_barrier")
visible = NPRE
w3r = deque((w3_time3[j], j) for j in range(NPRE, 59))
issued = NPRE
oq = deque()
scale_q = deque()
for j in range(PD):
    for lb in range(2): p3_reads(j, lb)
k(".p2align 3")
for j in range(59):
    for lb in range(2):
        t = 2*j + lb
        acc = (accB if j < 43 else accA) + 16*lb
        bf = ar(4*j, 4)
        k.wait(vm=[("h", j)] if j < 43 else [("o", j-43)], lg=("af", j, lb))
        c = "0" if j in (0, 43) else vr(acc, 16)
        k(f"v_mfma_f32_32x32x16_bf16 {vr(acc,16)}, {vr(a3F + (j % 4)*8 + 4*lb, 4)}, {bf}, {c}")
        if lb == 0 and j in bars3:
            nb = min([x for x in bars3 if x > j], default=59 + PD)
            upto = min(nb + PD, 59)
            assert issued >= upto, (j, issued, upto)
            k.wait(vm=[("w3", x) for x in range(upto)])
            k("s_barrier")
            visible = upto
        if j + PD < 59:
            assert j + PD < visible, (j, visible)
            p3_reads(j + PD, lb)
        if t == CFG["B_F3"]:
            k.wait(vm="st3")
            k.vmem(f"buffer_store_dwordx2 {vr(vTag,2)}, v{vOwn}, {sr(SWS)}, s{sF3} offen sc1", "f3")
        elif t == CFG["B_P3"]:
            k.vmem(f"buffer_load_dwordx2 {vr(vPoll,2)}, v{vP3}, {sr(SWS)}, 0 offen sc1", "p3")
        elif t == CFG["B_C3"]:
            poll_check("P3", vP3, "p3"); oq.extend(job_o(x) for x in range(16))
        elif oq: oq.popleft()()
        elif hq and (lb == 0 or not (w3r and w3r[0][0] <= j)): hq.popleft()()
        elif w3r and w3r[0][0] <= j:
            job_w3(w3r.popleft()[1])(); issued += 1
        if j == 44 and lb == 0:
            k.wait(vm="g3")
            scale_q.extend(f"v_mul_f32 v{accB+i}, v{vG3+1}, v{accB+i}" for i in range(32))
        for _ in range(2):
            if scale_q: k(scale_q.popleft())
assert not hq and not oq and not w3r and not scale_q
stamp()
for i in range(16, 32): k(f"v_fmac_f32 v{accB+i}, v{vG3}, v{accA+i}")
for i in range(4): k.ds(f"ds_write_b128 v{vEx}, {vr(accB+16+4*i,4)} offset:{EXU+1024*i}", "ex")
for i in range(16): k(f"v_fmac_f32 v{accB+i}, v{vG3}, v{accA+i}")
k.wait_all(lg=True)
k("s_barrier")
for i in range(4): k.ds(f"ds_read_b128 {vr(accA+4*i,4)}, v{vEx+1} offset:{EXU+1024*i}", ("exr", i))
for i in range(4):
    k.wait(lg=("exr", i))
    for j in range(4): k(f"v_add_f32 v{accB+4*i+j}, v{accB+4*i+j}, v{accA+4*i+j}")
    for j in range(2): k(f"v_cvt_pk_bf16_f32 v{accB+16+2*i+j}, v{accB+4*i+2*j}, v{accB+4*i+2*j+1}")
    if i % 2 == 1:
        pb = accB + 16 + 2*(i-1)
        k(f"v_permlane32_swap_b32 v{pb}, v{pb+2}")
        k(f"v_permlane32_swap_b32 v{pb+1}, v{pb+3}")
        k.vmem(f"buffer_store_dwordx4 {vr(pb,4)}, v{vOut}, {sr(SOUT)}, 0 offen offset:{16*(i-1)}", "out")
if CFG["stamps"]:
    k.wait_all(vm=True)
    stamp()
    k(f"s_lshl_b32 s{sT0}, s2, 2")
    k(f"s_add_u32 s{sT0}, s{sT0}, s{sW}")
    k(f"s_lshl_b32 s{sT0}, s{sT0}, 7")
    k(f"s_add_u32 s{sT0}, s{sT0}, {WD:#x}")
    k.wait_all(lg=True)
    i = nstamp[0]
    k(f"v_writelane_b32 v{vSt}, s{sStamp+2*((i-1)%2)}, {i-1}")
    k(f"v_lshlrev_b32 v{vT}, 2, v{vL}")
    k(f"v_cmp_gt_u32 vcc, 32, v{vL}")
    k(f"s_and_saveexec_b64 {sr(sC,2)}, vcc")
    k(f"buffer_store_dword v{vSt}, v{vT}, {sr(SWS)}, s{sT0} offen")
k.label("L_end")
k("s_endpgm")
for f in outofline: f()

hdr = open("gated_mix__sliding_block__dense_activation_silu__prompt.s.ref").read().split("\n")
hdr = [l for l in hdr if l.startswith(";") and "@launch" not in l]
out = "\n".join(hdr) + f"\n; @launch grid=(256,1,1) block=(256,1,1) lds={LDS_BYTES}\n"
out += f""".amdgcn_target "amdgcn-amd-amdhsa--gfx950"
.text
.globl {KNAME}
.p2align 8
.type {KNAME},@function
""" + k.text() + f"""
.section .rodata,"a"
.p2align 6
.amdhsa_kernel {KNAME}
  .amdhsa_next_free_vgpr 512
  .amdhsa_next_free_sgpr 102
  .amdhsa_accum_offset 256
  .amdhsa_group_segment_fixed_size 0
  .amdhsa_kernarg_size 80
  .amdhsa_user_sgpr_count 2
  .amdhsa_user_sgpr_kernarg_segment_ptr 1
  .amdhsa_system_sgpr_workgroup_id_x 1
.end_amdhsa_kernel
"""
open(sys.argv[1], "w").write(out)
print("nops inserted:", k.nops, k.log[:40], file=sys.stderr)
```

```python
import sys, struct
from collections import deque
from kb import KB, Regs

KNAME = "gated_mix__sliding_block__dense_activation_silu__prompt_kernel"
CFG = dict(
    stamps=False,
    spin=1 << 16,
    T_TAG=97, T_TAGCHK=120,
    T_F1=150, T_P1=160, T_C1=176,
    A_F2=14, A_P2=24, A_C2=31,
    A_HPER=1,
    B_F3=30, B_P3=44, B_C3=60,
    bars3=[10, 16, 22, 28, 34, 40, 46, 52],
    force_fallback=False,
    codepf=True,
    amp=None,
    dbgst=None,
    dbgwg=0,
)
for a in sys.argv[2:]:
    k, v = a.split("=")
    CFG[k] = eval(v)

def f32(x): return struct.unpack("<I", struct.pack("<f", x))[0]
LOG2E = 1.4426950408889634
WQ, WK, WV, WH, WO, WG, WF, WN, WD = 0x0, 0x200000, 0x400000, 0x600000, 0xC00000, 0xE00000, 0xE40000, 0xF00000, 0xF10000
WS_REC = 0x1000000
BIG = 0x40000000
F1, F2, F3 = WF, WF + 0x20000, WF + 0x40000
U = 4096
XSLOT = [0, 16384, 32768, 49152, 65536, 81920, 0, 16384]
WQSLOT = [24*U, 27*U, 30*U, 33*U, 36*U, 24*U, 27*U, 30*U]
W1SLOT = [9*U, 33*U, 12*U, 36*U, 16*U, 24*U, 20*U, 27*U]
KB_, VB_ = 0, 16384
LDS_BYTES = 163840

k = KB()
SX, SWQ, SW1, SW2, SWO, SWS, SOUT, SDBG, SGATE = 4, 8, 12, 16, 20, 24, 28, 32, 36
S = Regs(40, 100)
def sa(n, c=1, al=1): return S.alloc(n, c, al)
sW = sa("w"); sXcd = sa("xcd"); sJ = sa("j"); sRt = sa("rt"); sCt = sa("ct"); sRot = sa("rot")
sT0 = sa("t0"); sT1 = sa("t1"); sT2 = sa("t2"); sT3 = sa("t3")
sMx = sa("mx"); sMw = sa("mw"); sM3 = sa("m3")
sKx = sa("kx"); sKq = sa("kq"); sK1 = sa("k1")
sQKVst = sa("qkvst", 5)
sScale = sa("scale"); sH0 = sa("h0"); sH2 = sa("h2"); sGst = sa("gst")
sF1 = sa("f1"); sF3 = sa("f3")
sKoff = sa("koff"); sVoff = sa("voff"); sQoff = sa("qoff"); sMk = sa("mk"); sMv = sa("mv"); sOst = sa("ost", 2)
sHld = sa("hld"); sOld = sa("old"); sW3 = sa("w3"); sCnt = sa("cnt"); sRel0 = sa("rel0"); sRel = sa("rel")
sC = sa("c", 2, 2); sLo = sa("lo"); sHi = sa("hi"); sNl2e = sa("nl2e", 2, 2)
sPC = sa("pc", 2, 2)
sStamp = sa("stamp", 4, 2)
NST = 32

V = Regs(1, 256)
def va(n, c=1, al=1): return V.alloc(n, c, al)
vL = va("lane"); vL16 = va("l16"); vSt = va("stamps")
vT = va("tmp", 8, 4)
vX = va("x", 4); vWq = va("wq", 3); vW1 = va("w1", 3)
vXr = va("xr", 8); vWr = va("wr", 3)
vStN = va("stn"); vOwn = va("own")
vP1 = va("p1"); vP2 = va("p2"); vP3 = va("p3")
vKr = va("kr"); vV0 = va("v0"); vV1 = va("v1"); vOnesA = va("onesa")
vW3a = va("w3a"); vW3b = va("w3b"); vA = va("a", 6); vGl = va("gl"); vOut = va("out"); vEx = va("ex", 2)
vTag = va("tag", 4, 4); vPoll = va("poll", 2, 2); vG = va("g", 4, 4); vG3 = va("g3", 2, 2)
vOnes = va("ones", 4, 4)
vQ = va("q", 8, 4)
vCd = va("cd", 16, 4); vCf = va("cf", 16, 4)
accQ = va("accq", 48, 4); accH = va("acch", 48, 4); vWF = va("wf", 36, 4)
print("VGPR high water", V.next, "SGPR", S.next, file=sys.stderr)
aS = accQ; aP = accQ + 32
aK = vWF; aV = vWF + 8
aO = accH
aM = accH + 32
accB = accQ; a3F = vCd
accA = accH + 0

def vr(b, n): return f"v[{b}:{b+n-1}]"
def ar(b, n): return f"a[{b}:{b+n-1}]"
def sr(b, n=4): return f"s[{b}:{b+n-1}]"
def win(base, addr):
    return base + (addr >> 16), addr & 0xFFFF

nstamp = [0]
stnames = ["start"]
def stamp(name="", sync=False):
    if not CFG["stamps"]: return
    stnames.append(name)
    if sync: k.wait_all(lg=True)
    i = nstamp[0]; nstamp[0] += 1
    assert i < NST
    k(f"s_memtime {sr(sStamp+2*(i%2),2)}")
    if i: k(f"v_writelane_b32 v{vSt}, s{sStamp+2*((i-1)%2)}, {i-1}")

outofline = []

def poll_check(name, vaddr, back_wait_tag):
    if CFG["stamps"]: stamp(name + "_pre")
    k.wait(vm=back_wait_tag)
    k(f"v_cmp_ne_u64 vcc, {vr(vPoll,2)}, {vr(vTag,2)}")
    k(f"s_cbranch_vccnz {name}_slow")
    k.label(f"{name}_back")
    if CFG["stamps"]: stamp(name + "_post", True)
    def ool():
        k.label(f"{name}_slow")
        k(f"s_mov_b32 s{sCnt}, {CFG['spin']}")
        k.label(f"{name}_loop")
        k(f"buffer_load_dwordx2 {vr(vPoll,2)}, v{vaddr}, {sr(SWS)}, 0 offen sc1")
        k("s_waitcnt vmcnt(0)")
        k(f"v_cmp_ne_u64 vcc, {vr(vPoll,2)}, {vr(vTag,2)}")
        k(f"s_cbranch_vccz {name}_back")
        k(f"s_sub_u32 s{sCnt}, s{sCnt}, 1")
        k(f"s_cmp_lg_u32 s{sCnt}, 0")
        k(f"s_cbranch_scc1 {name}_loop")
        k(f"s_branch {name}_back")
    outofline.append(ool)

k.label(KNAME)
k("s_cmp_ge_u32 s2, 256")
k("s_cbranch_scc1 L_end")
for srd, off in ((SX, 0), (SWQ, 8), (SGATE, 48), (SWS, 72), (SW1, 32), (SDBG, 64), (SW2, 40), (SWO, 16), (SOUT, 56)):
    k(f"s_load_dwordx2 {sr(srd,2)}, s[0:1], {off}")
if CFG["stamps"]:
    k(f"s_memtime {sr(sStamp,2)}")
k(f"v_lshrrev_b32 v{vT}, 6, v0")
k(f"v_and_b32 v{vL}, 63, v0")
k(f"v_readfirstlane_b32 s{sW}, v{vT}")
k(f"s_and_b32 s{sXcd}, s2, 7")
k(f"s_lshr_b32 s{sJ}, s2, 3")
k(f"s_lshr_b32 s{sT0}, s{sJ}, 4")
k(f"s_lshl_b32 s{sRt}, s{sXcd}, 1")
k(f"s_add_u32 s{sRt}, s{sRt}, s{sT0}")
k(f"s_and_b32 s{sCt}, s{sJ}, 15")
k(f"s_add_u32 s{sRot}, s{sRt}, s{sCt}")
k(f"s_and_b32 s{sRot}, s{sRot}, 7")
for srd, n in ((SX, 2048*1024), (SWQ, 512*3072), (SGATE, 1024), (SWS, WS_REC), (SW1, 512*2752), (SDBG, 256), (SW2, 1376*1024), (SWO, 512*1024), (SOUT, 2048*1024)):
    k(f"s_mov_b32 s{srd+2}, {n:#x}")
    k(f"s_mov_b32 s{srd+3}, 0x20000")
k(f"v_lshlrev_b32 v{vL16}, 4, v{vL}")
t0, t1, t2, t3, t4, t5 = vT, vT+1, vT+2, vT+3, vT+4, vT+5
k(f"s_lshl_b32 s{sT0}, s{sW}, 15")
k(f"v_lshrrev_b32 v{t0}, 3, v{vL}")
k(f"v_lshlrev_b32 v{t0}, 10, v{t0}")
k(f"v_add_u32 v{t0}, s{sT0}, v{t0}")
k(f"v_lshrrev_b32 v{t1}, 4, v{vL}")
k(f"v_xor_b32 v{t1}, v{t1}, v{vL}")
k(f"v_and_b32 v{t1}, 7, v{t1}")
k(f"v_lshlrev_b32 v{t1}, 4, v{t1}")
k(f"v_add_u32 v{vX}, v{t0}, v{t1}")
k(f"v_xor_b32 v{vX+1}, 64, v{vX}")
k(f"v_add_u32 v{vX+1}, 7168, v{vX+1}")
k(f"v_add_u32 v{vX+2}, 14336, v{vX}")
k(f"v_add_u32 v{vX+3}, 14336, v{vX+1}")
k(f"s_lshl_b32 s{sT0}, s{sCt}, 7")
k(f"s_lshl_b32 s{sT1}, s{sCt}, 6")
k(f"s_add_u32 s{sT1}, s{sT1}, 1920")
k(f"s_mul_i32 s{sT2}, s{sCt}, 3")
k(f"s_lshl_b32 s{sT3}, s{sCt}, 1")
k(f"s_add_u32 s{sT3}, s{sT3}, 11")
k(f"s_cmp_lt_u32 s{sCt}, 11")
k(f"s_cselect_b32 s{sT2}, s{sT2}, s{sT3}")
k(f"s_mov_b32 s{sH0}, s{sT2}")
k(f"s_lshl_b32 s{sT2}, s{sT2}, 6")
k(f"s_lshl_b32 s{sT3}, s{sW}, 4")
k(f"v_mov_b32 v{t5}, s{sT1}")
k(f"s_movk_i32 s{sC}, 3072")
k(f"s_movk_i32 s{sC+1}, 2752")
for q in range(3):
    assert all(((64*q+l)*171) >> 11 == (64*q+l)//12 for l in range(64))
    k(f"v_add_u32 v{t0}, {64*q}, v{vL}")
    k(f"v_mul_u32_u24 v{t1}, 171, v{t0}")
    k(f"v_lshrrev_b32 v{t1}, 11, v{t1}")
    k(f"v_mul_u32_u24 v{t2}, 12, v{t1}")
    k(f"v_sub_u32 v{t2}, v{t0}, v{t2}")
    k(f"v_cmp_gt_u32 vcc, 8, v{t2}")
    k(f"v_mov_b32 v{t3}, s{sT0}")
    k(f"v_add_u32 v{t1}, s{sT3}, v{t1}")
    k(f"v_cndmask_b32 v{t3}, v{t5}, v{t3}, vcc")
    k(f"v_lshlrev_b32 v{t2}, 4, v{t2}")
    if q: k(f"v_subrev_u32 v{t2}, {1024*q}, v{t2}")
    k(f"v_mad_u32_u24 v{t4}, v{t1}, s{sC}, v{t2}")
    k(f"v_add_u32 v{vWq+q}, v{t4}, v{t3}")
    k(f"v_mad_u32_u24 v{t4}, v{t1}, s{sC+1}, v{t2}")
    k(f"v_add_u32 v{vW1+q}, s{sT2}, v{t4}")
k(f"s_lshl_b32 s{sMx}, s{sW}, 12")
k(f"s_mul_i32 s{sMw}, s{sW}, 3072")
k(f"s_lshl_b32 s{sT0}, s{sRt}, 17")
k(f"s_lshl_b32 s{sT1}, s{sW}, 15")
k(f"s_add_u32 s{sT1}, s{sT1}, s{sT0}")
k(f"s_lshl_b32 s{sT2}, s{sCt}, 11")
k(f"s_add_u32 s{sT1}, s{sT1}, s{sT2}")
k(f"s_mov_b32 s{sT2}, {WN:#x}")
k(f"v_mov_b32 v{t0}, 0")

def stage_off(s, which):
    k(f"s_add_u32 s{sT3}, s{sRot}, {s}")
    k(f"s_and_b32 s{sT3}, s{sT3}, 7")
    if which == "x":
        k(f"s_lshl_b32 s{sT3}, s{sT3}, 7")
        k(f"s_lshl_b32 s{sKx}, s{sRt}, 17")
        k(f"s_add_u32 s{sKx}, s{sKx}, s{sT3}")
    elif which == "wq": k(f"s_mul_i32 s{sKq}, s{sT3}, {64*3072}")
    else: k(f"s_mul_i32 s{sK1}, s{sT3}, {64*2752}")

def job_x(s):
    jobs = []
    for p in range(4):
        def f(p=p):
            if p == 0:
                stage_off(s, "x")
            k(f"s_add_u32 m0, s{sMx}, {XSLOT[s]}")
            k.vmem(f"buffer_load_dwordx4 v{vX+p}, {sr(SX)}, s{sKx} offen offset:{1024*p} lds", ("x", s))
        jobs.append(f)
    return jobs
def job_w(s, which):
    jobs = []
    slot = (WQSLOT if which == "wq" else W1SLOT)[s]
    for q in range(3):
        def f(q=q):
            if q == 0:
                stage_off(s, which)
            k(f"s_add_u32 m0, s{sMw}, {slot}")
            if which == "wq": k.vmem(f"buffer_load_dwordx4 v{vWq+q}, {sr(SWQ)}, s{sKq} offen offset:{1024*q} lds", ("wq", s))
            else: k.vmem(f"buffer_load_dwordx4 v{vW1+q}, {sr(SW1)}, s{sK1} offen offset:{1024*q} lds", ("w1", s))
        jobs.append(f)
    return jobs
def burst(s, which):
    stage_off(s, which)
    if which == "x":
        k(f"s_add_u32 m0, s{sMx}, {XSLOT[s]}")
        for p in range(4): k.vmem(f"buffer_load_dwordx4 v{vX+p}, {sr(SX)}, s{sKx} offen offset:{1024*p} lds", ("x", s))
    else:
        k(f"s_add_u32 m0, s{sMw}, {WQSLOT[s]}")
        for q in range(3): k.vmem(f"buffer_load_dwordx4 v{vWq+q}, {sr(SWQ)}, s{sKq} offen offset:{1024*q} lds", ("wq", s))

k.wait_all(lg=True)
if CFG["stamps"]: nstamp[0] = 1
stamp("karg", True)
gx0, gx1, gw, gt = accH, accH+4, accH+8, accH+12
burst(0, "x"); burst(0, "wq")
k.vmem(f"buffer_load_dwordx2 {vr(vPoll,2)}, v{t0}, {sr(SWS)}, s{sT2} offen sc1", "nonce")
k.vmem(f"buffer_load_dwordx4 {vr(gw,4)}, v{vL16}, {sr(SGATE)}, 0 offen", "gate")
k.vmem(f"buffer_load_dwordx4 {vr(gx0,4)}, v{vL16}, {sr(SX)}, s{sT1} offen", "gate")
k.vmem(f"buffer_load_dwordx4 {vr(gx1,4)}, v{vL16}, {sr(SX)}, s{sT1} offen offset:1024", "gate")
if CFG["codepf"]:
    k(f"s_getpc_b64 {sr(sPC,2)}")
    k.label("L_pc")
    k(f"s_and_b32 s{sT0}, s{sJ}, 3")
    k(f"s_lshl_b32 s{sT0}, s{sT0}, 13")
    k(f"s_lshl_b32 s{sT2}, s{sW}, 11")
    k(f"s_add_u32 s{sT0}, s{sT0}, s{sT2}")
    k(f"v_lshrrev_b32 v{t1}, 2, v{vL}")
    k(f"v_lshlrev_b32 v{t1}, 7, v{t1}")
    k(f"v_add_u32 v{t1}, s{sT0}, v{t1}")
    k(f"v_min_u32 v{t1}, L_end-L_pc, v{t1}")
    k.vmem(f"global_load_dword v{vOnes}, v{t1}, {sr(sPC,2)}", "codepf")
for s in range(1, 5):
    burst(s, "x"); burst(s, "wq")
burst(5, "x")
stamp("issued")

k(f"v_and_b32 v{t0}, 31, v{vL}")
k(f"v_lshrrev_b32 v{t1}, 5, v{vL}")
k(f"v_lshrrev_b32 v{t2}, 1, v{t0}")
k(f"v_and_b32 v{t2}, 7, v{t2}")
k(f"v_xor_b32 v{t2}, v{t2}, v{t1}")
k(f"v_lshlrev_b32 v{t2}, 4, v{t2}")
k(f"v_lshl_add_u32 v{t2}, v{t0}, 7, v{t2}")
k(f"v_add_u32 v{vXr}, s{sMx}, v{t2}")
for j in range(1, 4): k(f"v_xor_b32 v{vXr+j}, {32*j}, v{vXr}")
for j in range(4): k(f"v_add_u32 v{vXr+4+j}, 0x10000, v{vXr+j}")
k(f"v_bfe_u32 v{t2}, v{vL}, 2, 2")
k(f"v_bfe_u32 v{t3}, v{vL}, 4, 1")
k(f"v_and_b32 v{t4}, 3, v{vL}")
k(f"v_lshlrev_b32 v{t4}, 3, v{t4}")
k(f"v_lshl_add_u32 v{t4}, v{t3}, 5, v{t4}")
k(f"v_lshl_add_u32 v{t5}, v{t1}, 3, v{t2}")
k(f"v_mul_u32_u24 v{t5}, 192, v{t5}")
k(f"v_add_u32 v{vWr}, v{t5}, v{t4}")
k(f"v_add_u32 v{vWr+1}, 0x10000, v{vWr}")
k(f"v_add_u32 v{vWr+2}, 0x20000, v{vWr}")
k(f"s_lshr_b32 s{sT0}, s{sW}, 1")
k(f"s_and_b32 s{sT1}, s{sW}, 1")
k(f"v_lshl_add_u32 v{t5}, v{t1}, 2, v{t2}")
k(f"v_lshl_add_u32 v{t5}, v{t5}, 7, v{t4}")
k(f"v_lshrrev_b32 v{t2}, 1, v{t2}")
k(f"v_xor_b32 v{t2}, s{sT0}, v{t2}")
k(f"v_lshl_add_u32 v{t5}, v{t2}, 6, v{t5}")
k(f"s_lshl_b32 s{sT2}, s{sT0}, 11")
k(f"v_add_u32 v{vA}, s{sT2}, v{t5}")
k(f"v_add_u32 v{vA+1}, 0x10000, v{vA}")
k(f"v_add_u32 v{vA+2}, 0x20000, v{vA}")
for j in range(3): k(f"v_xor_b32 v{vA+3+j}, 64, v{vA+j}")
k(f"s_lshl_b32 s{sM3}, s{sW}, 10")
k(f"s_and_b32 s{sT2}, s{sJ}, 7")
k(f"s_lshl_b32 s{sT2}, s{sT2}, 7")
k(f"s_lshl_b32 s{sT3}, s{sT1}, 13")
k(f"s_add_u32 s{sT3}, s{sT3}, s{sT2}")
k(f"v_lshrrev_b32 v{t5}, 3, v{vL}")
k(f"v_lshlrev_b32 v{t5}, 10, v{t5}")
k(f"v_lshlrev_b32 v{t2}, 2, v{t3}")
k(f"v_xor_b32 v{t2}, v{t2}, v{vL}")
k(f"v_and_b32 v{t2}, 7, v{t2}")
k(f"v_lshl_add_u32 v{t5}, v{t2}, 4, v{t5}")
k(f"v_add_u32 v{t5}, s{sT3}, v{t5}")
k(f"s_mul_i32 s{sT3}, s{sT0}, {43*16384}")
k(f"v_add_u32 v{vW3a}, s{sT3}, v{t5}")
k(f"s_lshl_b32 s{sT3}, s{sT0}, 18")
k(f"v_add_u32 v{vW3b}, s{sT3}, v{t5}")
k(f"s_lshr_b32 s{sT3}, s{sJ}, 3")
k(f"s_lshl_b32 s{sC}, s{sXcd}, 2")
k(f"s_add_u32 s{sT3}, s{sT3}, s{sC}")
k(f"s_lshl_b32 s{sT3}, s{sT3}, 1")
k(f"s_add_u32 s{sT3}, s{sT3}, s{sT1}")
k(f"s_lshl_b32 s{sC}, s{sT3}, 15")
k(f"s_add_u32 s{sC}, s{sC}, s{sT2}")
k(f"s_lshl_b32 s{sC+1}, s{sT0}, 6")
k(f"s_add_u32 s{sC}, s{sC}, s{sC+1}")
k(f"v_lshlrev_b32 v{t5}, 10, v{t0}")
k(f"v_lshl_add_u32 v{t5}, v{t1}, 4, v{t5}")
k(f"v_add_u32 v{vOut}, s{sC}, v{t5}")
k(f"s_lshl_b32 s{sC}, s{sT3}, 11")
k(f"s_add_u32 s{sC}, s{sC}, {WG:#x}")
k(f"v_lshrrev_b32 v{t5}, 1, v{t0}")
k(f"v_lshlrev_b32 v{t5}, 7, v{t5}")
k(f"v_and_b32 v{t2}, 1, v{vL}")
k(f"v_lshl_add_u32 v{t5}, v{t2}, 3, v{t5}")
k(f"v_add_u32 v{vGl}, s{sC}, v{t5}")
k(f"s_mul_i32 s{sHld}, s{sT3}, 86")
k(f"s_mul_i32 s{sC}, s{sT0}, 43")
k(f"s_add_u32 s{sHld}, s{sHld}, s{sC}")
k(f"s_lshl_b32 s{sHld}, s{sHld}, 10")
k(f"s_add_u32 s{sHld}, s{sHld}, {WH:#x}")
k(f"s_lshl_b32 s{sOld}, s{sT3}, 15")
k(f"s_lshl_b32 s{sC}, s{sT0}, 14")
k(f"s_add_u32 s{sOld}, s{sOld}, s{sC}")
k(f"s_add_u32 s{sOld}, s{sOld}, {WO:#x}")
k(f"v_and_b32 v{t2}, 15, v{vL}")
k(f"s_lshr_b32 s{sC}, s{sT3}, 2")
k(f"s_lshl_b32 s{sC}, s{sC}, 13")
k(f"s_and_b32 s{sC+1}, s{sT3}, 3")
k(f"s_lshl_b32 s{sC+1}, s{sC+1}, 7")
k(f"s_add_u32 s{sC}, s{sC}, s{sC+1}")
k(f"s_add_u32 s{sC}, s{sC}, {F2:#x}")
k(f"v_lshlrev_b32 v{t5}, 9, v{t2}")
k(f"v_add_u32 v{vP2}, s{sC}, v{t5}")
k(f"s_lshl_b32 s{sC}, s{sT0}, 16")
k(f"s_lshr_b32 s{sC+1}, s{sT3}, 1")
k(f"s_lshl_b32 s{sC+1}, s{sC+1}, 7")
k(f"s_add_u32 s{sC}, s{sC}, s{sC+1}")
k(f"s_add_u32 s{sC}, s{sC}, {F3:#x}")
k(f"v_lshlrev_b32 v{t5}, 12, v{t2}")
k(f"v_add_u32 v{vP3}, s{sC}, v{t5}")
EXU = 0
k(f"v_add_u32 v{vEx}, s{sMx}, v{vL16}")
k(f"v_xor_b32 v{vEx+1}, 0x2000, v{vEx}")
k(f"s_lshl_b32 s{sC}, s{sRt}, 2")
k(f"s_add_u32 s{sC}, s{sC}, s{sW}")
k(f"s_lshl_b32 s{sC+1}, s{sC}, 10")
k(f"s_lshl_b32 s{sT2}, s{sCt}, 18")
k(f"s_add_u32 s{sQKVst}, s{sT2}, s{sC+1}")
for i in range(1, 4): k(f"s_add_u32 s{sQKVst+i}, s{sQKVst}, {i*65536}")
k(f"s_lshl_b32 s{sT2}, s{sCt}, 17")
k(f"s_add_u32 s{sT2}, s{sT2}, s{sC+1}")
k(f"s_add_u32 s{sQKVst+4}, s{sT2}, {WV:#x}")
k(f"s_mov_b32 s{sScale}, {f32(0.25*LOG2E):#x}")
k(f"s_cmp_lt_u32 s{sCt}, 8")
k(f"s_cselect_b32 s{sScale}, s{sScale}, 1.0")
k(f"v_lshlrev_b32 v{t5}, 16, v{t3}")
k(f"v_lshl_add_u32 v{t5}, v{t1}, 8, v{t5}")
k(f"v_lshl_add_u32 v{vStN}, v{t2}, 4, v{t5}")
k(f"s_lshl_b32 s{sH0}, s{sH0}, 1")
k(f"s_mul_i32 s{sT2}, s{sC}, 86")
k(f"s_add_u32 s{sH0}, s{sH0}, s{sT2}")
k(f"s_lshl_b32 s{sH0}, s{sH0}, 10")
k(f"s_add_u32 s{sH0}, s{sH0}, {WH:#x}")
k(f"s_add_u32 s{sH2}, s{sH0}, 4096")
k(f"s_cmp_lt_u32 s{sCt}, 11")
k(f"s_cselect_b32 s{sH2}, s{sH2}, {BIG:#x}")
k(f"s_lshl_b32 s{sGst}, s{sC}, 11")
k(f"s_lshl_b32 s{sT2}, s{sCt}, 7")
k(f"s_add_u32 s{sGst}, s{sGst}, s{sT2}")
k(f"s_add_u32 s{sGst}, s{sGst}, {WG:#x}")
k(f"s_lshl_b32 s{sF1}, s{sRt}, 4")
k(f"s_add_u32 s{sF1}, s{sF1}, s{sCt}")
k(f"s_lshl_b32 s{sF1}, s{sF1}, 2")
k(f"s_add_u32 s{sF1}, s{sF1}, s{sW}")
k(f"s_lshl_b32 s{sF1}, s{sF1}, 7")
k(f"s_add_u32 s{sF1}, s{sF1}, {F1:#x}")
k(f"s_lshl_b32 s{sF3}, s{sJ}, 3")
k(f"s_add_u32 s{sF3}, s{sF3}, s{sXcd}")
k(f"s_lshl_b32 s{sF3}, s{sF3}, 2")
k(f"s_add_u32 s{sF3}, s{sF3}, s{sW}")
k(f"s_lshl_b32 s{sF3}, s{sF3}, 7")
k(f"s_add_u32 s{sF3}, s{sF3}, {F3:#x}")
k(f"v_mov_b32 v{t5}, {BIG:#x}")
k(f"v_cmp_eq_u32 vcc, 63, v{vL}")
k(f"v_cndmask_b32 v{vOwn}, v{t5}, 0, vcc")
k(f"s_lshl_b32 s{sC}, s{sJ}, 6")
k(f"s_lshl_b32 s{sC+1}, s{sXcd}, 3")
k(f"s_add_u32 s{sC}, s{sC}, s{sC+1}")
k(f"s_lshl_b32 s{sT2}, s{sW}, 1")
k(f"s_add_u32 s{sQoff}, s{sC}, s{sT2}")
k(f"s_lshl_b32 s{sQoff}, s{sQoff}, 10")
k(f"s_lshl_b32 s{sT3}, s{sW}, 2")
k(f"s_add_u32 s{sKoff}, s{sC}, s{sT3}")
k(f"s_lshl_b32 s{sKoff}, s{sKoff}, 10")
k(f"s_add_u32 s{sKoff}, s{sKoff}, {WK - 8192:#x}")
k(f"s_add_u32 s{sVoff}, s{sKoff}, {WV - WK:#x}")
k(f"s_add_u32 s{sT3}, s{sT3}, s{sC+1}")
k(f"s_cmp_ge_u32 s{sT3}, 8")
k(f"s_cselect_b32 s{sKoff}, s{sKoff}, {BIG:#x}")
k(f"s_cselect_b32 s{sVoff}, s{sVoff}, {BIG:#x}")
k(f"s_cselect_b32 s{sT3}, 0x3f803f80, 0")
k(f"s_mov_b32 s{sLo}, s{sT3}")
k(f"s_add_u32 s{sMk}, s{sMx}, {KB_}")
k(f"s_mul_i32 s{sMv}, s{sW}, 4160")
k(f"s_add_u32 s{sMv}, s{sMv}, {VB_}")
k(f"v_and_b32 v{t5}, 3, v{vL}")
k(f"v_mul_u32_u24 v{t5}, 1040, v{t5}")
k(f"v_add_u32 v{t5}, s{sMv}, v{t5}")
k(f"v_add_u32 v{vOnesA}, 1024, v{t5}")
k(f"s_lshl_b32 s{sT3}, s{sW}, 11")
k(f"v_add_u32 v{vKr}, s{sT3}, v{vL16}")
k(f"s_mul_i32 s{sT3}, s{sW}, 2080")
k(f"v_lshlrev_b32 v{t5}, 8, v{t1}")
k(f"v_lshl_add_u32 v{t5}, v{t2}, 4, v{t5}")
k(f"v_add_u32 v{t4}, 512, v{t5}")
k(f"v_cmp_eq_u32 vcc, 0, v{t3}")
k(f"v_mov_b32 v{vV1}, 1024")
k(f"v_cndmask_b32 v{vV0}, v{vV1}, v{t5}, vcc")
k(f"v_cndmask_b32 v{vV1}, v{vV1}, v{t4}, vcc")
k(f"v_add_u32 v{vV0}, s{sT3}, v{vV0}")
k(f"v_add_u32 v{vV1}, s{sT3}, v{vV1}")
k(f"s_add_u32 s{sT3}, s{sC+1}, s{sT2}")
k(f"s_sub_u32 s{sRel0}, 8, s{sT3}")
k(f"s_lshl_b32 s{sT3}, s{sT3}, 5")
k(f"s_add_u32 s{sT3}, s{sT3}, s{sJ}")
k(f"s_lshl_b32 s{sT3}, s{sT3}, 10")
k(f"s_add_u32 s{sOst}, s{sT3}, {WO:#x}")
k(f"s_add_u32 s{sOst+1}, s{sOst}, 32768")
k(f"s_lshl_b32 s{sC}, s{sXcd}, 1")
k(f"s_lshr_b32 s{sC+1}, s{sW}, 1")
k(f"s_add_u32 s{sC+1}, s{sC+1}, s{sC}")
k(f"s_lshl_b32 s{sC+1}, s{sC+1}, 6")
k(f"s_and_b32 s{sT3}, s{sJ}, 28")
k(f"s_add_u32 s{sC+1}, s{sC+1}, s{sT3}")
k(f"s_and_b32 s{sT2}, s{sT2}, 3")
k(f"s_add_u32 s{sC+1}, s{sC+1}, s{sT2}")
k(f"v_and_b32 v{t5}, 1, v{vL}")
k(f"v_add_u32 v{t5}, s{sC+1}, v{t5}")
k(f"s_add_u32 s{sC}, s{sC}, s{sW}")
k(f"s_sub_u32 s{sC}, s{sC}, 2")
k(f"s_lshl_b32 s{sC}, s{sC}, 6")
k(f"s_add_u32 s{sT2}, s{sC}, s{sT3}")
k(f"s_add_u32 s{sT2}, s{sT2}, 32")
k(f"s_lshl_b32 s{sT3}, s{sJ}, 1")
k(f"s_and_b32 s{sT3}, s{sT3}, 60")
k(f"s_add_u32 s{sT3}, s{sT3}, s{sC}")
k(f"s_sub_u32 s{sT3}, s{sT3}, 4")
k(f"v_add_u32 v{t4}, s{sT2}, v{vL}")
k(f"v_add_u32 v{t2}, s{sT3}, v{vL}")
k(f"v_cmp_gt_u32 vcc, 4, v{vL}")
k(f"s_cmp_lg_u32 s{sLo}, 0")
k(f"s_cselect_b32 s{sT2}, 8, 0")
k(f"v_cndmask_b32 v{t4}, v{t2}, v{t4}, vcc")
k(f"v_cmp_gt_u32 vcc, s{sT2}, v{vL}")
k(f"v_cndmask_b32 v{t4}, v{t5}, v{t4}, vcc")
k(f"v_lshlrev_b32 v{t4}, 7, v{t4}")
k(f"v_add_u32 v{vP1}, {F1:#x}, v{t4}")
k(f"v_lshlrev_b32 v{t5}, 2, v{t1}")
k(f"v_sub_u32 v{t5}, v{t0}, v{t5}")
k(f"v_mov_b32 v{t4}, {f32(-1e30):#x}")
for r in range(16):
    key = 8*(r//4) + r % 4
    k(f"v_cmp_le_i32 vcc, {key}, v{t5}")
    k(f"s_nop 1")
    k(f"v_cndmask_b32 v{vCd+r}, v{t4}, 0, vcc")
    k(f"v_cndmask_b32 v{vCf+r}, 0, v{t4}, vcc")
k(f"s_mov_b32 s{sNl2e}, {f32(-LOG2E):#x}")
k(f"s_mov_b32 s{sNl2e+1}, {f32(-LOG2E):#x}")
stamp("setup")
k.wait(vm="nonce")
stamp("nonce", True)
k(f"v_add_u32 v{vTag}, 1, v{vPoll}")
k(f"v_mov_b32 v{vTag+1}, v{vPoll+1}")
k(f"v_mov_b32 v{vTag+2}, 1")
k(f"v_mov_b32 v{vTag+3}, 0")
k(f"s_or_b32 s{sT2}, s2, s{sW}")
k(f"s_cmp_eq_u32 s{sT2}, 0")
k(f"s_cselect_b32 s{sT2}, 0, {BIG:#x}")
k(f"s_add_u32 s{sT3}, s{sT2}, {WN:#x}")
k.vmem(f"buffer_store_dwordx4 {vr(vTag,4)}, v{vOwn}, {sr(SDBG)}, s{sT2} offen sc1", "tagst")
k.vmem(f"buffer_store_dwordx2 {vr(vTag,2)}, v{vOwn}, {sr(SWS)}, s{sT3} offen sc1", "tagst")
k.wait(vm=["gate", "codepf"])
stamp("gatew", True)
gwf = gt
for i in range(4):
    k(f"v_lshlrev_b32 v{gwf+2*i}, 16, v{gw+i}")
    k(f"v_and_b32 v{gwf+2*i+1}, 0xffff0000, v{gw+i}")
z = [gt+8, gt+9]; p = gt+10
for row, gx in enumerate((gx0, gx1)):
    for i in range(4):
        k(f"v_lshlrev_b32 v{p+2*i}, 16, v{gx+i}")
        k(f"v_and_b32 v{p+2*i+1}, 0xffff0000, v{gx+i}")
    for i in range(8): k(f"v_mul_f32 v{p+i}, v{p+i}, v{gwf+i}")
    for i in range(4): k(f"v_cvt_pk_bf16_f32 v{gx+i}, v{p+2*i}, v{p+2*i+1}")
    for i in range(4):
        k(f"v_lshlrev_b32 v{p+2*i}, 16, v{gx+i}")
        k(f"v_and_b32 v{p+2*i+1}, 0xffff0000, v{gx+i}")
    for i in range(4): k(f"v_add_f32 v{p+i}, v{p+i}, v{p+4+i}")
    k(f"v_add_f32 v{p}, v{p}, v{p+2}")
    k(f"v_add_f32 v{p+1}, v{p+1}, v{p+3}")
    k(f"v_add_f32 v{z[row]}, v{p}, v{p+1}")
for m in ("row_shr:1 row_mask:0xf bank_mask:0xf bound_ctrl:0", "row_shr:2 row_mask:0xf bank_mask:0xf bound_ctrl:0",
          "row_shr:4 row_mask:0xf bank_mask:0xf bound_ctrl:0", "row_shr:8 row_mask:0xf bank_mask:0xf bound_ctrl:0",
          "row_bcast:15 row_mask:0xa bank_mask:0xf", "row_bcast:31 row_mask:0xc bank_mask:0xf"):
    for row in range(2): k(f"v_add_f32_dpp v{z[row]}, v{z[row]}, v{z[row]} {m}")
k(f"v_cvt_pk_bf16_f32 v{p}, v{z[0]}, v{z[1]}")
k(f"v_lshlrev_b32 v{z[0]}, 16, v{p}")
k(f"v_and_b32 v{z[1]}, 0xffff0000, v{p}")
for row in range(2): k(f"v_mul_f32 v{z[row]}, s{sNl2e}, v{z[row]}")
for row in range(2): k(f"v_exp_f32 v{z[row]}, v{z[row]}")
for row in range(2): k(f"v_add_f32 v{z[row]}, 1.0, v{z[row]}")
for row in range(2): k(f"v_rcp_f32 v{z[row]}, v{z[row]}")
k(f"v_cvt_pk_bf16_f32 v{p}, v{z[0]}, v{z[1]}")
k(f"v_lshlrev_b32 v{vG}, 16, v{p}")
k(f"v_and_b32 v{vG+2}, 0xffff0000, v{p}")
k(f"v_sub_f32 v{z[0]}, 1.0, v{vG}")
k(f"v_sub_f32 v{z[1]}, 1.0, v{vG+2}")
k(f"v_cvt_pk_bf16_f32 v{p}, v{z[0]}, v{z[1]}")
k(f"v_lshlrev_b32 v{vG+1}, 16, v{p}")
k(f"v_and_b32 v{vG+3}, 0xffff0000, v{p}")
for i in range(4): k(f"v_mov_b32 v{vOnes+i}, s{sLo}")
k(f"s_mov_b32 s{sLo}, {f32(2.0**-60):#x}")
k(f"s_mov_b32 s{sHi}, {f32(2.0**60):#x}")
k(f"s_mov_b32 s{sW3}, 0")

def tb(S_): return 12*S_ - 6
free_p1 = {39: 0, 15: tb(5), 19: tb(6), 23: tb(7)}
for u in (30, 31, 32): free_p1[u] = tb(9)
for s in range(6):
    for u in range(3): free_p1[W1SLOT[s]//U + u] = tb(8+s+2)
units_p1 = sorted(free_p1, key=lambda u: free_p1[u])
units_att = [W1SLOT[6]//U + u for u in range(3)] + [W1SLOT[7]//U + u for u in range(3)]
units_p3 = list(range(4, 9))
w3_unit = units_p1 + units_att + units_p3
NPRE = len(units_p1) + len(units_att)
bars3 = CFG["bars3"]
w3_time3 = {}
nxt = len(w3_unit); src = 0
for j in range(NPRE, nxt): w3_time3[j] = 0
while nxt < 59:
    b = min(x for x in bars3 if x >= src + 1)
    w3_unit.append(w3_unit[src]); w3_time3[nxt] = b; nxt += 1; src += 1
print("w3 units", w3_unit, "times", w3_time3, file=sys.stderr)

def job_w3(j):
    def f():
        if j == 43: k(f"s_mov_b32 s{sW3}, 0")
        k(f"s_add_u32 m0, s{sM3}, {w3_unit[j]*U}")
        if j < 43: k.vmem(f"buffer_load_dwordx4 v{vW3a}, {sr(SW2)}, s{sW3} offen lds", ("w3", j))
        else: k.vmem(f"buffer_load_dwordx4 v{vW3b}, {sr(SWO)}, s{sW3} offen lds", ("w3", j))
        k(f"s_add_u32 s{sW3}, s{sW3}, 16384")
    return f

mem = deque()
for t, js in ((10, job_x(6)), (tb(2), job_w(5, "wq")), (22, job_x(7)), (tb(3), job_w(6, "wq")), (tb(4), job_w(7, "wq")),
              (tb(4), job_w(0, "w1")), (tb(5), job_w(1, "w1")), (tb(5), job_w(2, "w1")), (tb(6), job_w(3, "w1")), (tb(6), job_w(4, "w1")),
              (tb(7), job_w(5, "w1")), (tb(7), job_w(6, "w1")), (tb(8), job_w(7, "w1"))):
    for j in js: mem.append((t, j))
w3q = deque((max(free_p1[u], 93), job_w3(j)) for j, u in enumerate(units_p1))

def p1_reads(g, b):
    S_ = g // 4
    slot = WQSLOT[S_] if S_ < 8 else W1SLOT[S_-8]
    if b == 0 and g < 32:
        a = XSLOT[S_]
        k.ds(f"ds_read_b128 {ar(4*g,4)}, v{vXr + 4*(a >> 16) + g % 4} offset:{a & 0xFFFF}", ("xf", g))
    for e in range(2):
        r, o = win(vWr, slot + (g % 4)*3072 + e*768 + b*64)
        d = vWF + (g % 3)*12 + 4*b + 2*e
        k.ds(f"ds_read_b64_tr_b16 {vr(d,2)}, v{r} offset:{o}", ("wf", g, b))
def stage_tags(S_): return [("x", S_), ("wq", S_)] if S_ < 8 else [("w1", S_-8)]

valu = deque()
for b in range(3):
    a = accQ + 16*b
    for h in range(2):
        if b < 2:
            for i in range(8): valu.append(f"v_mul_f32 v{a+8*h+i}, s{sScale}, v{a+8*h+i}")
        for i in range(4): valu.append(f"v_cvt_pk_bf16_f32 v{a+8*h+i}, v{a+8*h+2*i}, v{a+8*h+2*i+1}")
        if b < 2: valu.append(("st", f"buffer_store_dwordx4 {vr(a+8*h,4)}, v{vL16}, {sr(SWS)}, s{sQKVst+2*b+h} offen sc1"))
        else: valu.append(("st", f"buffer_store_dwordx4 {vr(a+8*h,4)}, v{vStN}, {sr(SWS)}, s{sQKVst+4} offen offset:{512*h} sc1"))
valu.append(("st", f"buffer_store_dwordx4 {vr(vG,4)}, v{vOwn}, {sr(SWS)}, s{sGst} offen sc1"))

def tag_check():
    stamp("tag_pre")
    k.wait(vm="tagld")
    k(f"v_cmp_eq_u32 vcc, 0, v{vTag+2}")
    k("s_cbranch_vccnz TAG_slow")
    k.label("TAG_back")
    stamp("tag_post", True)
    def ool():
        k.label("TAG_slow")
        k(f"s_mov_b32 s{sCnt}, {CFG['spin']}")
        k.label("TAG_loop")
        k(f"buffer_load_dwordx4 {vr(vTag,4)}, off, {sr(SDBG)}, 0 sc1")
        k("s_waitcnt vmcnt(0)")
        k(f"v_cmp_eq_u32 vcc, 0, v{vTag+2}")
        k("s_cbranch_vccz TAG_back")
        k(f"s_sub_u32 s{sCnt}, s{sCnt}, 1")
        k(f"s_cmp_lg_u32 s{sCnt}, 0")
        k("s_cbranch_scc1 TAG_loop")
        k("s_branch TAG_back")
    outofline.append(ool)

kvq = deque()
def kv_jobs():
    def fk(i):
        def f():
            if i == 0: k(f"s_mov_b32 m0, s{sMk}")
            k.vmem(f"buffer_load_dwordx4 v{vL16}, {sr(SWS)}, s{sKoff} offen offset:{1024*i} sc1 lds", "kv")
        return f
    def fv(i):
        def f():
            k(f"s_add_u32 m0, s{sMv}, {16*i}")
            k.vmem(f"buffer_load_dwordx4 v{vL16}, {sr(SWS)}, s{sVoff} offen offset:{1024*i} sc1 lds", "kv")
        return f
    def fq(q):
        def f(): k.vmem(f"buffer_load_dwordx4 {vr(vQ+4*q,4)}, v{vL16}, {sr(SWS)}, s{sQoff} offen offset:{1024*q} sc1", "kv")
        return f
    return [fk(i) for i in range(4)] + [fq(0), fq(1)] + [fv(i) for i in range(4)]

stamp("gate_done", True)
k.wait(vm=stage_tags(0))
k("s_barrier")
stamp("bar0", True)
for g in range(2):
    for b in range(3): p1_reads(g, b)
k(".p2align 3")
for g in range(64):
    for b in range(3):
        t = 3*g + b
        acc = (accQ if g < 32 else accH) + 16*b
        k.wait(lg=[("wf", g, b), ("xf", g)])
        wf = vr(vWF + (g % 3)*12 + 4*b, 4); xf = ar(4*(g % 32), 4)
        c = "0" if g % 32 == 0 else vr(acc, 16)
        if g < 32 and b == 2: k(f"v_mfma_f32_32x32x16_bf16 {vr(acc,16)}, {xf}, {wf}, {c}")
        else: k(f"v_mfma_f32_32x32x16_bf16 {vr(acc,16)}, {wf}, {xf}, {c}")
        if b == 0 and (g + 2) % 4 == 0 and g + 2 < 64:
            k.wait(vm=stage_tags((g + 2)//4))
            k("s_barrier")
        if g + 2 < 64: p1_reads(g + 2, b)
        did = False
        if t == CFG["T_TAG"]:
            k.vmem(f"buffer_load_dwordx4 {vr(vTag,4)}, off, {sr(SDBG)}, 0 sc1", "tagld"); did = True
        elif t == CFG["T_TAGCHK"]:
            tag_check(); did = True
        elif t == CFG["T_F1"]:
            assert not valu
            stamp("f1_pre")
            k.wait(vm="st1")
            stamp("f1_post", True)
            k.vmem(f"buffer_store_dwordx2 {vr(vTag,2)}, v{vOwn}, {sr(SWS)}, s{sF1} offen sc1", "f1"); did = True
        elif t == CFG["T_P1"]:
            k.vmem(f"buffer_load_dwordx2 {vr(vPoll,2)}, v{vP1}, {sr(SWS)}, 0 offen sc1", "p1"); did = True
        elif t == CFG["T_C1"]:
            poll_check("P1", vP1, "p1"); kvq.extend(kv_jobs()); did = True
            k.ds(f"ds_write_b128 v{vOnesA}, {vr(vOnes,4)}", "ones")
        if not did and mem and mem[0][0] <= t:
            mem.popleft()[1](); did = True
        if not did and kvq:
            kvq.popleft()(); did = True
        if not did and w3q and w3q[0][0] <= t and not (CFG["T_P1"] - 6 <= t <= CFG["T_C1"]) and t % 2 == 0:
            w3q.popleft()[1](); did = True
        if t >= 98:
            n = 0
            while valu and n < 3:
                it = valu[0]
                if isinstance(it, tuple):
                    if did: break
                    k.vmem(it[1], "st1"); did = True; n += 1
                else: k(it); n += 1
                valu.popleft()
        if t == 95: stamp("qkv")
assert not mem and not valu
while kvq: kvq.popleft()()
stamp("ffn1")
tmp = accQ
for b in range(3):
    a = accH + 16*b
    for i in range(8): k(f"v_pk_mul_f32 {vr(tmp+2*i,2)}, {vr(a+2*i,2)}, {sr(sNl2e,2)}")
    for i in range(16): k(f"v_exp_f32 v{tmp+i}, v{tmp+i}")
    for i in range(8): k(f"v_pk_add_f32 {vr(tmp+2*i,2)}, {vr(tmp+2*i,2)}, 1.0 op_sel_hi:[1,0]")
    for i in range(16): k(f"v_rcp_f32 v{tmp+i}, v{tmp+i}")
    for i in range(8): k(f"v_pk_mul_f32 {vr(a+2*i,2)}, {vr(a+2*i,2)}, {vr(tmp+2*i,2)}")
    for h in range(2):
        for i in range(4): k(f"v_cvt_pk_bf16_f32 v{a+8*h+i}, v{a+8*h+2*i}, v{a+8*h+2*i+1}")
        if b < 2: k.vmem(f"buffer_store_dwordx4 {vr(a+8*h,4)}, v{vL16}, {sr(SWS)}, s{sH0} offen offset:{2048*b+1024*h} sc1", "st2")
        else: k.vmem(f"buffer_store_dwordx4 {vr(a+8*h,4)}, v{vL16}, {sr(SWS)}, s{sH2} offen offset:{1024*h} sc1", "st2")
stamp("silu")

k.wait(vm="kv", lg="ones")
k("s_barrier")
stamp("kvbar", True)
tiles = [(0, 0)]
for i in range(1, 9): tiles += [(0, i), (1, i)]
tiles.append((1, 9))
def rdK(i): k.ds(f"ds_read_b128 {vr(aK+4*(i%2),4)}, v{vKr} offset:{KB_+1024*i}", ("k", i))
def rdV(i, t): k.ds(f"ds_read_b128 {vr(aV+8*(i%3)+4*t,4)}, v{vV0+t} offset:{VB_+1040*i}", ("v", i, t))
def mS(n):
    q, i = tiles[n]
    c = vr(vCf, 16) if i == q else vr(vCd, 16) if i == q + 8 else "0"
    k.wait(lg=("k", i))
    k(f"v_mfma_f32_32x32x16_bf16 {vr(aS+16*(n%2),16)}, {vr(aK+4*(i%2),4)}, {vr(vQ+4*q,4)}, {c}")
def mPV(n, t):
    q, i = tiles[n]
    o = vr(aO+16*q, 16)
    k.wait(lg=("v", i, t))
    k(f"v_mfma_f32_32x32x16_bf16 {o}, {vr(aV+8*(i%3)+4*t,4)}, {vr(aP+8*(n%2)+4*t,4)}, {'0' if (i == q and t == 0) else o}")
attq = deque(list(w3q) + [(0, job_w3(len(units_p1)+j)) for j in range(len(units_att))])
hq = deque()
def job_h(j):
    def f():
        if j and j % 4 == 0: k(f"s_add_u32 s{sHld}, s{sHld}, 4096")
        k.vmem(f"buffer_load_dwordx4 {ar(4*j,4)}, v{vL16}, {sr(SWS)}, s{sHld} offen offset:{1024*(j%4)} sc1", ("h", j))
    return f
gapn = [0]
def att_gap(ds):
    t = gapn[0]; gapn[0] += 1
    for f in ds: f()
    if t == CFG["A_F2"]:
        stamp("f2_pre")
        k.wait(vm="st2")
        stamp("f2_post", True)
        k(f"s_add_u32 s{sF1}, s{sF1}, {F2-F1:#x}")
        k.vmem(f"buffer_store_dwordx2 {vr(vTag,2)}, v{vOwn}, {sr(SWS)}, s{sF1} offen sc1", "f2")
    elif t == CFG["A_P2"]:
        assert not attq
        k.vmem(f"buffer_load_dwordx2 {vr(vPoll,2)}, v{vP2}, {sr(SWS)}, 0 offen sc1", "p2")
    elif t == CFG["A_C2"]:
        poll_check("P2", vP2, "p2")
        hq.extend(job_h(j) for j in range(43))
        k.vmem(f"buffer_load_dwordx2 {vr(vG3,2)}, v{vGl}, {sr(SWS)}, 0 offen sc1", "g3")
    elif attq: attq.popleft()[1]()
    else:
        for _ in range(CFG["A_HPER"]):
            if hq: hq.popleft()()
rdK(0); rdK(1); rdV(0, 0); rdV(0, 1)
mS(0)
k(".p2align 3")
for n in range(18):
    sb = aS + 16*(n % 2); pb = aP + 8*(n % 2)
    q, i = tiles[n]
    dsA, dsB = [], []
    if n + 1 < 18:
        qn, in_ = tiles[n + 1]
        if qn == 1 and in_ + 2 <= 9: dsA.append(lambda a=in_: rdK(a + 2))
        if n + 1 == 1: pass
    if n == 0: dsB += [lambda: rdV(1, 0), lambda: rdV(1, 1)]
    if q == 0 and i >= 1 and i + 1 <= 9: dsB += [lambda a=i: rdV(a + 1, 0), lambda a=i: rdV(a + 1, 1)]
    if n + 1 < 18:
        mS(n + 1)
        if n == 0: dsA.append(lambda: rdK(2))
        att_gap(dsA)
    for r in range(4): k(f"v_exp_f32 v{sb+r}, v{sb+r}")
    if n >= 1: mPV(n - 1, 0); att_gap([])
    for r in range(4, 8): k(f"v_exp_f32 v{sb+r}, v{sb+r}")
    if n >= 1: mPV(n - 1, 1)
    if n >= 1 or dsB: att_gap(dsB)
    for r in range(8, 16): k(f"v_exp_f32 v{sb+r}, v{sb+r}")
    for r in range(8): k(f"v_cvt_pk_bf16_f32 v{pb+r}, v{sb+2*r}, v{sb+2*r+1}")
mPV(17, 0); mPV(17, 1)
print("attention gaps", gapn[0], "h loads left", len(hq), file=sys.stderr)
k(f"v_cmp_gt_f32 vcc, s{sLo}, v{aO+8}")
k(f"v_cmp_nge_f32 {sr(sC,2)}, s{sHi}, v{aO+8}")
k(f"s_or_b64 {sr(sC,2)}, {sr(sC,2)}, vcc")
k(f"v_cmp_gt_f32 vcc, s{sLo}, v{aO+24}")
k(f"s_or_b64 {sr(sC,2)}, {sr(sC,2)}, vcc")
k(f"v_cmp_nge_f32 vcc, s{sHi}, v{aO+24}")
k(f"s_or_b64 vcc, {sr(sC,2)}, vcc")
if CFG["force_fallback"]: k("s_branch FB")
else: k("s_cbranch_scc1 FB")
k.label("FB_back")
for q in range(2):
    o = aO + 16*q
    k(f"v_rcp_f32 v{o+8}, v{o+8}")
    for i in range(8): k(f"v_mul_f32 v{o+i}, v{o+i}, v{o+8}")
    for i in range(4): k(f"v_cvt_pk_bf16_f32 v{o+i}, v{o+2*i}, v{o+2*i+1}")
    k.vmem(f"buffer_store_dwordx4 {vr(o,4)}, v{vL16}, {sr(SWS)}, s{sOst+q} offen sc1", "st3")

def fallback():
    vm_, vka, vva, vvb = vT, vT+1, vT+2, vT+3
    k.label("FB")
    k("s_nop 15")
    for q in range(2):
        o = aO + 16*q
        for ps in range(2):
            L = f"FB{q}{ps}"
            k(f"s_sub_i32 s{sRel}, s{sRel0}, {q}")
            k(f"s_max_i32 s{sRel}, s{sRel}, 0")
            if ps == 0: k(f"v_mov_b32 v{vm_}, {f32(-3e38):#x}")
            else:
                for r in range(16): k(f"v_mov_b32 v{o+r}, 0")
            k.label(L + "_loop")
            k(f"s_add_u32 s{sT0}, s{sRel}, {q}")
            k(f"s_lshl_b32 s{sT1}, s{sT0}, 10")
            k(f"v_add_u32 v{vka}, s{sT1}, v{vKr}")
            k(f"ds_read_b128 {vr(aK,4)}, v{vka} offset:{KB_}")
            if ps == 1:
                k(f"s_mul_i32 s{sT1}, s{sT0}, 1040")
                k(f"v_add_u32 v{vva}, s{sT1}, v{vV0}")
                k(f"v_add_u32 v{vvb}, s{sT1}, v{vV1}")
                k(f"ds_read_b128 {vr(aV,4)}, v{vva} offset:{VB_}")
                k(f"ds_read_b128 {vr(aV+4,4)}, v{vvb} offset:{VB_}")
            k(f"s_cmp_eq_u32 s{sRel}, 0")
            k(f"s_cbranch_scc1 {L}_far")
            k(f"s_cmp_eq_u32 s{sRel}, 8")
            k(f"s_cbranch_scc1 {L}_diag")
            k("s_waitcnt lgkmcnt(0)")
            k(f"v_mfma_f32_32x32x16_bf16 {vr(aS,16)}, {vr(aK,4)}, {vr(vQ+4*q,4)}, 0")
            k(f"s_branch {L}_go")
            k.label(L + "_far")
            k("s_waitcnt lgkmcnt(0)")
            k(f"v_mfma_f32_32x32x16_bf16 {vr(aS,16)}, {vr(aK,4)}, {vr(vQ+4*q,4)}, {vr(vCf,16)}")
            k(f"s_branch {L}_go")
            k.label(L + "_diag")
            k("s_waitcnt lgkmcnt(0)")
            k(f"v_mfma_f32_32x32x16_bf16 {vr(aS,16)}, {vr(aK,4)}, {vr(vQ+4*q,4)}, {vr(vCd,16)}")
            k.label(L + "_go")
            k("s_nop 15")
            if ps == 0:
                for r in range(8): k(f"v_max3_f32 v{vm_}, v{aS+2*r}, v{aS+2*r+1}, v{vm_}")
            else:
                for r in range(16): k(f"v_sub_f32 v{aS+r}, v{aS+r}, v{vm_}")
                for r in range(16): k(f"v_exp_f32 v{aS+r}, v{aS+r}")
                for r in range(8): k(f"v_cvt_pk_bf16_f32 v{aP+r}, v{aS+2*r}, v{aS+2*r+1}")
                k(f"v_mfma_f32_32x32x16_bf16 {vr(o,16)}, {vr(aV,4)}, {vr(aP,4)}, {vr(o,16)}")
                k(f"v_mfma_f32_32x32x16_bf16 {vr(o,16)}, {vr(aV+4,4)}, {vr(aP+4,4)}, {vr(o,16)}")
                k("s_nop 15")
            k(f"s_add_u32 s{sRel}, s{sRel}, 1")
            k(f"s_cmp_le_u32 s{sRel}, 8")
            k(f"s_cbranch_scc1 {L}_loop")
            if ps == 0:
                k(f"v_mov_b32 v{vka}, v{vm_}")
                k(f"v_permlane32_swap_b32 v{vm_}, v{vka}")
                k(f"v_max_f32 v{vm_}, v{vm_}, v{vka}")
    k("s_nop 15")
    k("s_branch FB_back")
outofline.append(fallback)
stamp("att")

PD = 3
def p3_reads(j, lb):
    for e in range(2):
        r, o = win(vA + 3*lb, w3_unit[j]*U + e*1024)
        k.ds(f"ds_read_b64_tr_b16 {vr(a3F + (j % 4)*8 + 4*lb + 2*e, 2)}, v{r} offset:{o}", ("af", j, lb))
def job_o(j):
    def f():
        if j and j % 4 == 0: k(f"s_add_u32 s{sOld}, s{sOld}, 4096")
        k.vmem(f"buffer_load_dwordx4 {ar(172+4*j,4)}, v{vL16}, {sr(SWS)}, s{sOld} offen offset:{1024*(j%4)} sc1", ("o", j))
    return f
k.wait(vm=[("w3", j) for j in range(NPRE)])
k.wait_all(lg=True)
k("s_barrier")
stamp("p3bar", True)
visible = NPRE
w3r = deque((w3_time3[j], j) for j in range(NPRE, 59))
issued = NPRE
oq = deque()
scale_q = deque()
for j in range(PD):
    for lb in range(2): p3_reads(j, lb)
k(".p2align 3")
for j in range(59):
    for lb in range(2):
        t = 2*j + lb
        acc = (accB if j < 43 else accA) + 16*lb
        bf = ar(4*j, 4)
        k.wait(vm=[("h", j)] if j < 43 else [("o", j-43)], lg=("af", j, lb))
        c = "0" if j in (0, 43) else vr(acc, 16)
        k(f"v_mfma_f32_32x32x16_bf16 {vr(acc,16)}, {vr(a3F + (j % 4)*8 + 4*lb, 4)}, {bf}, {c}")
        if lb == 0 and j in bars3:
            nb = min([x for x in bars3 if x > j], default=59 + PD)
            upto = min(nb + PD, 59)
            assert issued >= upto, (j, issued, upto)
            k.wait(vm=[("w3", x) for x in range(upto)])
            k("s_barrier")
            visible = upto
        if j + PD < 59:
            assert j + PD < visible, (j, visible)
            p3_reads(j + PD, lb)
        if t == CFG["B_F3"]:
            stamp("f3_pre")
            k.wait(vm="st3")
            stamp("f3_post", True)
            k.vmem(f"buffer_store_dwordx2 {vr(vTag,2)}, v{vOwn}, {sr(SWS)}, s{sF3} offen sc1", "f3")
        elif t == CFG["B_P3"]:
            k.vmem(f"buffer_load_dwordx2 {vr(vPoll,2)}, v{vP3}, {sr(SWS)}, 0 offen sc1", "p3")
        elif t == CFG["B_C3"]:
            poll_check("P3", vP3, "p3"); oq.extend(job_o(x) for x in range(16))
        elif oq: oq.popleft()()
        elif hq and (lb == 0 or not (w3r and w3r[0][0] <= j)): hq.popleft()()
        elif w3r and w3r[0][0] <= j:
            job_w3(w3r.popleft()[1])(); issued += 1
        if j == 44 and lb == 0:
            k.wait(vm="g3")
            scale_q.extend(f"v_mul_f32 v{accB+i}, v{vG3+1}, v{accB+i}" for i in range(32))
        for _ in range(2):
            if scale_q: k(scale_q.popleft())
assert not hq and not oq and not w3r and not scale_q
stamp("p3")
for i in range(16, 32): k(f"v_fmac_f32 v{accB+i}, v{vG3}, v{accA+i}")
for i in range(4): k.ds(f"ds_write_b128 v{vEx}, {vr(accB+16+4*i,4)} offset:{EXU+1024*i}", "ex")
for i in range(16): k(f"v_fmac_f32 v{accB+i}, v{vG3}, v{accA+i}")
k.wait_all(lg=True)
k("s_barrier")
for i in range(4): k.ds(f"ds_read_b128 {vr(accA+4*i,4)}, v{vEx+1} offset:{EXU+1024*i}", ("exr", i))
for i in range(4):
    k.wait(lg=("exr", i))
    for j in range(4): k(f"v_add_f32 v{accB+4*i+j}, v{accB+4*i+j}, v{accA+4*i+j}")
    for j in range(2): k(f"v_cvt_pk_bf16_f32 v{accB+16+2*i+j}, v{accB+4*i+2*j}, v{accB+4*i+2*j+1}")
    if i % 2 == 1:
        pb = accB + 16 + 2*(i-1)
        k(f"v_permlane32_swap_b32 v{pb}, v{pb+2}")
        k(f"v_permlane32_swap_b32 v{pb+1}, v{pb+3}")
        k.vmem(f"buffer_store_dwordx4 {vr(pb,4)}, v{vOut}, {sr(SOUT)}, 0 offen offset:{16*(i-1)}", "out")
if CFG["stamps"]:
    k.wait_all(vm=True)
    stamp("end")
    k(f"s_lshl_b32 s{sT0}, s2, 2")
    k(f"s_add_u32 s{sT0}, s{sT0}, s{sW}")
    k(f"s_lshl_b32 s{sT0}, s{sT0}, 7")
    k(f"s_add_u32 s{sT0}, s{sT0}, {WD:#x}")
    k.wait_all(lg=True)
    i = nstamp[0]
    k(f"v_writelane_b32 v{vSt}, s{sStamp+2*((i-1)%2)}, {i-1}")
    k(f"v_lshlrev_b32 v{vT}, 2, v{vL}")
    k(f"v_cmp_gt_u32 vcc, 32, v{vL}")
    k(f"s_and_saveexec_b64 {sr(sC,2)}, vcc")
    k(f"buffer_store_dword v{vSt}, v{vT}, {sr(SWS)}, s{sT0} offen")
    if CFG["dbgst"]:
        k(f"v_readlane_b32 s{sT0}, v{vSt}, 0")
        k(f"s_lshl_b32 s{sT2}, s2, 2")
        k(f"s_add_u32 s{sT2}, s{sT2}, s{sW}")
        k(f"s_cmp_eq_u32 s{sT2}, {CFG['dbgwg']*4}")
        k(f"s_cselect_b32 s{sT2}, 0, {BIG:#x}")
        for n, nm in enumerate(CFG["dbgst"]):
            k(f"v_readlane_b32 s{sT1}, v{vSt}, {stnames.index(nm)}")
            k("s_nop 3")
            k(f"s_sub_u32 s{sT1}, s{sT1}, s{sT0}")
            k(f"v_mov_b32 v{vT+1}, s{sT1}")
            k(f"buffer_store_dword v{vT+1}, off, {sr(SDBG)}, s{sT2} offset:{16+4*n}")
    if CFG["amp"]:
        a, b, K = CFG["amp"]
        if a == "fixed": k(f"s_mov_b32 s{sT1}, {b}")
        else:
            k(f"v_readlane_b32 s{sT0}, v{vSt}, {stnames.index(a)}")
            k(f"v_readlane_b32 s{sT1}, v{vSt}, {stnames.index(b)}")
            k("s_nop 3")
            k(f"s_sub_u32 s{sT1}, s{sT1}, s{sT0}")
            k(f"s_mul_i32 s{sT1}, s{sT1}, {K}")
            k(f"s_min_u32 s{sT1}, s{sT1}, 2000000")
        k(f"v_readlane_b32 s{sT0}, v{vSt}, {i-1}")
        k("s_nop 3")
        k.label("AMP")
        k(f"s_memtime {sr(sStamp,2)}")
        k("s_waitcnt lgkmcnt(0)")
        k(f"s_sub_u32 s{sT2}, s{sStamp}, s{sT0}")
        k(f"s_cmp_lt_u32 s{sT2}, s{sT1}")
        k("s_cbranch_scc1 AMP")
k.label("L_end")
k("s_endpgm")
for f in outofline: f()

hdr = open("gated_mix__sliding_block__dense_activation_silu__prompt.s.ref").read().split("\n")
hdr = [l for l in hdr if l.startswith(";") and "@launch" not in l]
out = "\n".join(hdr) + f"\n; @launch grid=(256,1,1) block=(256,1,1) lds={LDS_BYTES}\n"
out += f""".amdgcn_target "amdgcn-amd-amdhsa--gfx950"
.text
.globl {KNAME}
.p2align 8
.type {KNAME},@function
""" + k.text() + f"""
.section .rodata,"a"
.p2align 6
.amdhsa_kernel {KNAME}
  .amdhsa_next_free_vgpr 512
  .amdhsa_next_free_sgpr 102
  .amdhsa_accum_offset 256
  .amdhsa_group_segment_fixed_size 0
  .amdhsa_kernarg_size 80
  .amdhsa_user_sgpr_count 2
  .amdhsa_user_sgpr_kernarg_segment_ptr 1
  .amdhsa_system_sgpr_workgroup_id_x 1
.end_amdhsa_kernel
"""
open(sys.argv[1], "w").write(out)
open(sys.argv[1][:-2] + ".names", "w").write(" ".join(stnames))
print("nops inserted:", k.nops, k.log[:40], file=sys.stderr)
```

```python
import sys, struct
from collections import deque
from kb import KB, Regs

KNAME = "gated_mix__sliding_block__dense_activation_silu__prompt_kernel"
CFG = dict(
    stamps=False,
    spin=1 << 16,
    T_TAG=97, T_TAGCHK=120,
    T_F1=150, T_P1=160, T_C1=176,
    A_F2=14, A_P2=24, A_C2=31,
    A_HPER=1,
    B_F3=30, B_P3=44, B_C3=60,
    bars3=[10, 16, 22, 28, 34, 40, 46, 52],
    force_fallback=False,
    codepf=True,
    amp=None,
    dbgst=None,
    dbgwg=0,
)
for a in sys.argv[2:]:
    k, v = a.split("=")
    CFG[k] = eval(v)

def f32(x): return struct.unpack("<I", struct.pack("<f", x))[0]
LOG2E = 1.4426950408889634
WQ, WK, WV, WH, WO, WG, WF, WN, WD = 0x0, 0x200000, 0x400000, 0x600000, 0xC00000, 0xE00000, 0xE40000, 0xF00000, 0xF10000
WS_REC = 0x1000000
BIG = 0x40000000
F1, F2, F3 = WF, WF + 0x20000, WF + 0x40000
U = 4096
XSLOT = [0, 16384, 32768, 49152, 65536, 81920, 0, 16384]
WQSLOT = [24*U, 27*U, 30*U, 33*U, 36*U, 24*U, 27*U, 30*U]
W1SLOT = [9*U, 33*U, 12*U, 36*U, 16*U, 24*U, 20*U, 27*U]
KB_, VB_ = 0, 16384
LDS_BYTES = 163840

k = KB()
SX, SWQ, SW1, SW2, SWO, SWS, SOUT, SDBG, SGATE = 4, 8, 12, 16, 20, 24, 28, 32, 36
S = Regs(40, 100)
def sa(n, c=1, al=1): return S.alloc(n, c, al)
sW = sa("w"); sXcd = sa("xcd"); sJ = sa("j"); sRt = sa("rt"); sCt = sa("ct"); sRot = sa("rot")
sT0 = sa("t0"); sT1 = sa("t1"); sT2 = sa("t2"); sT3 = sa("t3")
sMx = sa("mx"); sMw = sa("mw"); sM3 = sa("m3")
sKx = sa("kx"); sKq = sa("kq"); sK1 = sa("k1")
sQKVst = sa("qkvst", 5)
sScale = sa("scale"); sH0 = sa("h0"); sH2 = sa("h2"); sGst = sa("gst")
sF1 = sa("f1"); sF3 = sa("f3")
sKoff = sa("koff"); sVoff = sa("voff"); sQoff = sa("qoff"); sMk = sa("mk"); sMv = sa("mv"); sOst = sa("ost", 2)
sHld = sa("hld"); sOld = sa("old"); sW3 = sa("w3"); sCnt = sa("cnt"); sRel0 = sa("rel0"); sRel = sa("rel")
sC = sa("c", 2, 2); sLo = sa("lo"); sHi = sa("hi"); sNl2e = sa("nl2e", 2, 2)
sPC = sa("pc", 2, 2)
sStamp = sa("stamp", 4, 2)
NST = 30

V = Regs(1, 256)
def va(n, c=1, al=1): return V.alloc(n, c, al)
vL = va("lane"); vL16 = va("l16"); vSt = va("stamps")
vT = va("tmp", 8, 4)
vX = va("x", 4); vWq = va("wq", 3); vW1 = va("w1", 3)
vXr = va("xr", 8); vWr = va("wr", 3)
vStN = va("stn"); vOwn = va("own")
vP1 = va("p1"); vP2 = va("p2"); vP3 = va("p3")
vKr = va("kr"); vV0 = va("v0"); vV1 = va("v1"); vOnesA = va("onesa")
vW3a = va("w3a"); vW3b = va("w3b"); vA = va("a", 6); vGl = va("gl"); vOut = va("out"); vEx = va("ex", 2)
vTag = va("tag", 4, 4); vPoll = va("poll", 2, 2); vG = va("g", 4, 4); vG3 = va("g3", 2, 2)
vOnes = va("ones", 4, 4)
vQ = va("q", 8, 4)
vCd = va("cd", 16, 4); vCf = va("cf", 16, 4)
accQ = va("accq", 48, 4); accH = va("acch", 48, 4); vWF = va("wf", 36, 4)
print("VGPR high water", V.next, "SGPR", S.next, file=sys.stderr)
aS = accQ; aP = accQ + 32
aK = vWF; aV = vWF + 8
aO = accH
aM = accH + 32
accB = accQ; a3F = vCd
accA = accH + 0

def vr(b, n): return f"v[{b}:{b+n-1}]"
def ar(b, n): return f"a[{b}:{b+n-1}]"
def sr(b, n=4): return f"s[{b}:{b+n-1}]"
def win(base, addr):
    return base + (addr >> 16), addr & 0xFFFF

nstamp = [0]
stnames = ["start"]
def stamp(name="", sync=False):
    if not CFG["stamps"]: return
    stnames.append(name)
    if sync: k.wait_all(lg=True)
    i = nstamp[0]; nstamp[0] += 1
    assert i < NST
    k(f"s_memtime {sr(sStamp+2*(i%2),2)}")
    if i: k(f"v_writelane_b32 v{vSt}, s{sStamp+2*((i-1)%2)}, {i-1}")

outofline = []

def poll_check(name, vaddr, back_wait_tag):
    if CFG["stamps"]: stamp(name + "_pre")
    k.wait(vm=back_wait_tag)
    k(f"v_cmp_ne_u64 vcc, {vr(vPoll,2)}, {vr(vTag,2)}")
    k(f"s_cbranch_vccnz {name}_slow")
    k.label(f"{name}_back")
    if CFG["stamps"]: stamp(name + "_post", True)
    def ool():
        k.label(f"{name}_slow")
        k(f"s_mov_b32 s{sCnt}, {CFG['spin']}")
        k.label(f"{name}_loop")
        k(f"buffer_load_dwordx2 {vr(vPoll,2)}, v{vaddr}, {sr(SWS)}, 0 offen sc1")
        k("s_waitcnt vmcnt(0)")
        k(f"v_cmp_ne_u64 vcc, {vr(vPoll,2)}, {vr(vTag,2)}")
        k(f"s_cbranch_vccz {name}_back")
        k(f"s_sub_u32 s{sCnt}, s{sCnt}, 1")
        k(f"s_cmp_lg_u32 s{sCnt}, 0")
        k(f"s_cbranch_scc1 {name}_loop")
        k(f"s_branch {name}_back")
    outofline.append(ool)

k.label(KNAME)
k("s_cmp_ge_u32 s2, 256")
k("s_cbranch_scc1 L_end")
for srd, off in ((SX, 0), (SWQ, 8), (SGATE, 48), (SWS, 72), (SW1, 32), (SDBG, 64), (SW2, 40), (SWO, 16), (SOUT, 56)):
    k(f"s_load_dwordx2 {sr(srd,2)}, s[0:1], {off}")
if CFG["stamps"]:
    k(f"s_memtime {sr(sStamp,2)}")
    k(f"s_memrealtime s[96:97]")
k(f"v_lshrrev_b32 v{vT}, 6, v0")
k(f"v_and_b32 v{vL}, 63, v0")
k(f"v_readfirstlane_b32 s{sW}, v{vT}")
k(f"s_and_b32 s{sXcd}, s2, 7")
k(f"s_lshr_b32 s{sJ}, s2, 3")
k(f"s_lshr_b32 s{sT0}, s{sJ}, 4")
k(f"s_lshl_b32 s{sRt}, s{sXcd}, 1")
k(f"s_add_u32 s{sRt}, s{sRt}, s{sT0}")
k(f"s_and_b32 s{sCt}, s{sJ}, 15")
k(f"s_add_u32 s{sRot}, s{sRt}, s{sCt}")
k(f"s_and_b32 s{sRot}, s{sRot}, 7")
for srd, n in ((SX, 2048*1024), (SWQ, 512*3072), (SGATE, 1024), (SWS, WS_REC), (SW1, 512*2752), (SDBG, 256), (SW2, 1376*1024), (SWO, 512*1024), (SOUT, 2048*1024)):
    k(f"s_mov_b32 s{srd+2}, {n:#x}")
    k(f"s_mov_b32 s{srd+3}, 0x20000")
k(f"v_lshlrev_b32 v{vL16}, 4, v{vL}")
t0, t1, t2, t3, t4, t5 = vT, vT+1, vT+2, vT+3, vT+4, vT+5
k(f"s_lshl_b32 s{sT0}, s{sW}, 15")
k(f"v_lshrrev_b32 v{t0}, 3, v{vL}")
k(f"v_lshlrev_b32 v{t0}, 10, v{t0}")
k(f"v_add_u32 v{t0}, s{sT0}, v{t0}")
k(f"v_lshrrev_b32 v{t1}, 4, v{vL}")
k(f"v_xor_b32 v{t1}, v{t1}, v{vL}")
k(f"v_and_b32 v{t1}, 7, v{t1}")
k(f"v_lshlrev_b32 v{t1}, 4, v{t1}")
k(f"v_add_u32 v{vX}, v{t0}, v{t1}")
k(f"v_xor_b32 v{vX+1}, 64, v{vX}")
k(f"v_add_u32 v{vX+1}, 7168, v{vX+1}")
k(f"v_add_u32 v{vX+2}, 14336, v{vX}")
k(f"v_add_u32 v{vX+3}, 14336, v{vX+1}")
k(f"s_lshl_b32 s{sT0}, s{sCt}, 7")
k(f"s_lshl_b32 s{sT1}, s{sCt}, 6")
k(f"s_add_u32 s{sT1}, s{sT1}, 1920")
k(f"s_mul_i32 s{sT2}, s{sCt}, 3")
k(f"s_lshl_b32 s{sT3}, s{sCt}, 1")
k(f"s_add_u32 s{sT3}, s{sT3}, 11")
k(f"s_cmp_lt_u32 s{sCt}, 11")
k(f"s_cselect_b32 s{sT2}, s{sT2}, s{sT3}")
k(f"s_mov_b32 s{sH0}, s{sT2}")
k(f"s_lshl_b32 s{sT2}, s{sT2}, 6")
k(f"s_lshl_b32 s{sT3}, s{sW}, 4")
k(f"v_mov_b32 v{t5}, s{sT1}")
k(f"s_movk_i32 s{sC}, 3072")
k(f"s_movk_i32 s{sC+1}, 2752")
for q in range(3):
    assert all(((64*q+l)*171) >> 11 == (64*q+l)//12 for l in range(64))
    k(f"v_add_u32 v{t0}, {64*q}, v{vL}")
    k(f"v_mul_u32_u24 v{t1}, 171, v{t0}")
    k(f"v_lshrrev_b32 v{t1}, 11, v{t1}")
    k(f"v_mul_u32_u24 v{t2}, 12, v{t1}")
    k(f"v_sub_u32 v{t2}, v{t0}, v{t2}")
    k(f"v_cmp_gt_u32 vcc, 8, v{t2}")
    k(f"v_mov_b32 v{t3}, s{sT0}")
    k(f"v_add_u32 v{t1}, s{sT3}, v{t1}")
    k(f"v_cndmask_b32 v{t3}, v{t5}, v{t3}, vcc")
    k(f"v_lshlrev_b32 v{t2}, 4, v{t2}")
    if q: k(f"v_subrev_u32 v{t2}, {1024*q}, v{t2}")
    k(f"v_mad_u32_u24 v{t4}, v{t1}, s{sC}, v{t2}")
    k(f"v_add_u32 v{vWq+q}, v{t4}, v{t3}")
    k(f"v_mad_u32_u24 v{t4}, v{t1}, s{sC+1}, v{t2}")
    k(f"v_add_u32 v{vW1+q}, s{sT2}, v{t4}")
k(f"s_lshl_b32 s{sMx}, s{sW}, 12")
k(f"s_mul_i32 s{sMw}, s{sW}, 3072")
k(f"s_lshl_b32 s{sT0}, s{sRt}, 17")
k(f"s_lshl_b32 s{sT1}, s{sW}, 15")
k(f"s_add_u32 s{sT1}, s{sT1}, s{sT0}")
k(f"s_lshl_b32 s{sT2}, s{sCt}, 11")
k(f"s_add_u32 s{sT1}, s{sT1}, s{sT2}")
k(f"s_mov_b32 s{sT2}, {WN:#x}")
k(f"v_mov_b32 v{t0}, 0")

def stage_off(s, which):
    k(f"s_add_u32 s{sT3}, s{sRot}, {s}")
    k(f"s_and_b32 s{sT3}, s{sT3}, 7")
    if which == "x":
        k(f"s_lshl_b32 s{sT3}, s{sT3}, 7")
        k(f"s_lshl_b32 s{sKx}, s{sRt}, 17")
        k(f"s_add_u32 s{sKx}, s{sKx}, s{sT3}")
    elif which == "wq": k(f"s_mul_i32 s{sKq}, s{sT3}, {64*3072}")
    else: k(f"s_mul_i32 s{sK1}, s{sT3}, {64*2752}")

def job_x(s):
    jobs = []
    for p in range(4):
        def f(p=p):
            if p == 0:
                stage_off(s, "x")
            k(f"s_add_u32 m0, s{sMx}, {XSLOT[s]}")
            k.vmem(f"buffer_load_dwordx4 v{vX+p}, {sr(SX)}, s{sKx} offen offset:{1024*p} lds", ("x", s))
        jobs.append(f)
    return jobs
def job_w(s, which):
    jobs = []
    slot = (WQSLOT if which == "wq" else W1SLOT)[s]
    for q in range(3):
        def f(q=q):
            if q == 0:
                stage_off(s, which)
            k(f"s_add_u32 m0, s{sMw}, {slot}")
            if which == "wq": k.vmem(f"buffer_load_dwordx4 v{vWq+q}, {sr(SWQ)}, s{sKq} offen offset:{1024*q} lds", ("wq", s))
            else: k.vmem(f"buffer_load_dwordx4 v{vW1+q}, {sr(SW1)}, s{sK1} offen offset:{1024*q} lds", ("w1", s))
        jobs.append(f)
    return jobs
def burst(s, which):
    stage_off(s, which)
    if which == "x":
        k(f"s_add_u32 m0, s{sMx}, {XSLOT[s]}")
        for p in range(4): k.vmem(f"buffer_load_dwordx4 v{vX+p}, {sr(SX)}, s{sKx} offen offset:{1024*p} lds", ("x", s))
    else:
        k(f"s_add_u32 m0, s{sMw}, {WQSLOT[s]}")
        for q in range(3): k.vmem(f"buffer_load_dwordx4 v{vWq+q}, {sr(SWQ)}, s{sKq} offen offset:{1024*q} lds", ("wq", s))

k.wait_all(lg=True)
if CFG["stamps"]: nstamp[0] = 1
stamp("karg", True)
gx0, gx1, gw, gt = accH, accH+4, accH+8, accH+12
burst(0, "x"); burst(0, "wq")
k.vmem(f"buffer_load_dwordx2 {vr(vPoll,2)}, v{t0}, {sr(SWS)}, s{sT2} offen sc1", "nonce")
k.vmem(f"buffer_load_dwordx4 {vr(gw,4)}, v{vL16}, {sr(SGATE)}, 0 offen", "gate")
k.vmem(f"buffer_load_dwordx4 {vr(gx0,4)}, v{vL16}, {sr(SX)}, s{sT1} offen", "gate")
k.vmem(f"buffer_load_dwordx4 {vr(gx1,4)}, v{vL16}, {sr(SX)}, s{sT1} offen offset:1024", "gate")
if CFG["codepf"]:
    k(f"s_getpc_b64 {sr(sPC,2)}")
    k.label("L_pc")
    k(f"s_and_b32 s{sT0}, s{sJ}, 3")
    k(f"s_lshl_b32 s{sT0}, s{sT0}, 13")
    k(f"s_lshl_b32 s{sT2}, s{sW}, 11")
    k(f"s_add_u32 s{sT0}, s{sT0}, s{sT2}")
    k(f"v_lshrrev_b32 v{t1}, 2, v{vL}")
    k(f"v_lshlrev_b32 v{t1}, 7, v{t1}")
    k(f"v_add_u32 v{t1}, s{sT0}, v{t1}")
    k(f"v_min_u32 v{t1}, L_end-L_pc, v{t1}")
    k.vmem(f"global_load_dword v{vOnes}, v{t1}, {sr(sPC,2)}", "codepf")
for s in range(1, 5):
    burst(s, "x"); burst(s, "wq")
burst(5, "x")
stamp("issued")

k(f"v_and_b32 v{t0}, 31, v{vL}")
k(f"v_lshrrev_b32 v{t1}, 5, v{vL}")
k(f"v_lshrrev_b32 v{t2}, 1, v{t0}")
k(f"v_and_b32 v{t2}, 7, v{t2}")
k(f"v_xor_b32 v{t2}, v{t2}, v{t1}")
k(f"v_lshlrev_b32 v{t2}, 4, v{t2}")
k(f"v_lshl_add_u32 v{t2}, v{t0}, 7, v{t2}")
k(f"v_add_u32 v{vXr}, s{sMx}, v{t2}")
for j in range(1, 4): k(f"v_xor_b32 v{vXr+j}, {32*j}, v{vXr}")
for j in range(4): k(f"v_add_u32 v{vXr+4+j}, 0x10000, v{vXr+j}")
k(f"v_bfe_u32 v{t2}, v{vL}, 2, 2")
k(f"v_bfe_u32 v{t3}, v{vL}, 4, 1")
k(f"v_and_b32 v{t4}, 3, v{vL}")
k(f"v_lshlrev_b32 v{t4}, 3, v{t4}")
k(f"v_lshl_add_u32 v{t4}, v{t3}, 5, v{t4}")
k(f"v_lshl_add_u32 v{t5}, v{t1}, 3, v{t2}")
k(f"v_mul_u32_u24 v{t5}, 192, v{t5}")
k(f"v_add_u32 v{vWr}, v{t5}, v{t4}")
k(f"v_add_u32 v{vWr+1}, 0x10000, v{vWr}")
k(f"v_add_u32 v{vWr+2}, 0x20000, v{vWr}")
k(f"s_lshr_b32 s{sT0}, s{sW}, 1")
k(f"s_and_b32 s{sT1}, s{sW}, 1")
k(f"v_lshl_add_u32 v{t5}, v{t1}, 2, v{t2}")
k(f"v_lshl_add_u32 v{t5}, v{t5}, 7, v{t4}")
k(f"v_lshrrev_b32 v{t2}, 1, v{t2}")
k(f"v_xor_b32 v{t2}, s{sT0}, v{t2}")
k(f"v_lshl_add_u32 v{t5}, v{t2}, 6, v{t5}")
k(f"s_lshl_b32 s{sT2}, s{sT0}, 11")
k(f"v_add_u32 v{vA}, s{sT2}, v{t5}")
k(f"v_add_u32 v{vA+1}, 0x10000, v{vA}")
k(f"v_add_u32 v{vA+2}, 0x20000, v{vA}")
for j in range(3): k(f"v_xor_b32 v{vA+3+j}, 64, v{vA+j}")
k(f"s_lshl_b32 s{sM3}, s{sW}, 10")
k(f"s_and_b32 s{sT2}, s{sJ}, 7")
k(f"s_lshl_b32 s{sT2}, s{sT2}, 7")
k(f"s_lshl_b32 s{sT3}, s{sT1}, 13")
k(f"s_add_u32 s{sT3}, s{sT3}, s{sT2}")
k(f"v_lshrrev_b32 v{t5}, 3, v{vL}")
k(f"v_lshlrev_b32 v{t5}, 10, v{t5}")
k(f"v_lshlrev_b32 v{t2}, 2, v{t3}")
k(f"v_xor_b32 v{t2}, v{t2}, v{vL}")
k(f"v_and_b32 v{t2}, 7, v{t2}")
k(f"v_lshl_add_u32 v{t5}, v{t2}, 4, v{t5}")
k(f"v_add_u32 v{t5}, s{sT3}, v{t5}")
k(f"s_mul_i32 s{sT3}, s{sT0}, {43*16384}")
k(f"v_add_u32 v{vW3a}, s{sT3}, v{t5}")
k(f"s_lshl_b32 s{sT3}, s{sT0}, 18")
k(f"v_add_u32 v{vW3b}, s{sT3}, v{t5}")
k(f"s_lshr_b32 s{sT3}, s{sJ}, 3")
k(f"s_lshl_b32 s{sC}, s{sXcd}, 2")
k(f"s_add_u32 s{sT3}, s{sT3}, s{sC}")
k(f"s_lshl_b32 s{sT3}, s{sT3}, 1")
k(f"s_add_u32 s{sT3}, s{sT3}, s{sT1}")
k(f"s_lshl_b32 s{sC}, s{sT3}, 15")
k(f"s_add_u32 s{sC}, s{sC}, s{sT2}")
k(f"s_lshl_b32 s{sC+1}, s{sT0}, 6")
k(f"s_add_u32 s{sC}, s{sC}, s{sC+1}")
k(f"v_lshlrev_b32 v{t5}, 10, v{t0}")
k(f"v_lshl_add_u32 v{t5}, v{t1}, 4, v{t5}")
k(f"v_add_u32 v{vOut}, s{sC}, v{t5}")
k(f"s_lshl_b32 s{sC}, s{sT3}, 11")
k(f"s_add_u32 s{sC}, s{sC}, {WG:#x}")
k(f"v_lshrrev_b32 v{t5}, 1, v{t0}")
k(f"v_lshlrev_b32 v{t5}, 7, v{t5}")
k(f"v_and_b32 v{t2}, 1, v{vL}")
k(f"v_lshl_add_u32 v{t5}, v{t2}, 3, v{t5}")
k(f"v_add_u32 v{vGl}, s{sC}, v{t5}")
k(f"s_mul_i32 s{sHld}, s{sT3}, 86")
k(f"s_mul_i32 s{sC}, s{sT0}, 43")
k(f"s_add_u32 s{sHld}, s{sHld}, s{sC}")
k(f"s_lshl_b32 s{sHld}, s{sHld}, 10")
k(f"s_add_u32 s{sHld}, s{sHld}, {WH:#x}")
k(f"s_lshl_b32 s{sOld}, s{sT3}, 15")
k(f"s_lshl_b32 s{sC}, s{sT0}, 14")
k(f"s_add_u32 s{sOld}, s{sOld}, s{sC}")
k(f"s_add_u32 s{sOld}, s{sOld}, {WO:#x}")
k(f"v_and_b32 v{t2}, 15, v{vL}")
k(f"s_lshr_b32 s{sC}, s{sT3}, 2")
k(f"s_lshl_b32 s{sC}, s{sC}, 13")
k(f"s_and_b32 s{sC+1}, s{sT3}, 3")
k(f"s_lshl_b32 s{sC+1}, s{sC+1}, 7")
k(f"s_add_u32 s{sC}, s{sC}, s{sC+1}")
k(f"s_add_u32 s{sC}, s{sC}, {F2:#x}")
k(f"v_lshlrev_b32 v{t5}, 9, v{t2}")
k(f"v_add_u32 v{vP2}, s{sC}, v{t5}")
k(f"s_lshl_b32 s{sC}, s{sT0}, 16")
k(f"s_lshr_b32 s{sC+1}, s{sT3}, 1")
k(f"s_lshl_b32 s{sC+1}, s{sC+1}, 7")
k(f"s_add_u32 s{sC}, s{sC}, s{sC+1}")
k(f"s_add_u32 s{sC}, s{sC}, {F3:#x}")
k(f"v_lshlrev_b32 v{t5}, 12, v{t2}")
k(f"v_add_u32 v{vP3}, s{sC}, v{t5}")
EXU = 0
k(f"v_add_u32 v{vEx}, s{sMx}, v{vL16}")
k(f"v_xor_b32 v{vEx+1}, 0x2000, v{vEx}")
k(f"s_lshl_b32 s{sC}, s{sRt}, 2")
k(f"s_add_u32 s{sC}, s{sC}, s{sW}")
k(f"s_lshl_b32 s{sC+1}, s{sC}, 10")
k(f"s_lshl_b32 s{sT2}, s{sCt}, 18")
k(f"s_add_u32 s{sQKVst}, s{sT2}, s{sC+1}")
for i in range(1, 4): k(f"s_add_u32 s{sQKVst+i}, s{sQKVst}, {i*65536}")
k(f"s_lshl_b32 s{sT2}, s{sCt}, 17")
k(f"s_add_u32 s{sT2}, s{sT2}, s{sC+1}")
k(f"s_add_u32 s{sQKVst+4}, s{sT2}, {WV:#x}")
k(f"s_mov_b32 s{sScale}, {f32(0.25*LOG2E):#x}")
k(f"s_cmp_lt_u32 s{sCt}, 8")
k(f"s_cselect_b32 s{sScale}, s{sScale}, 1.0")
k(f"v_lshlrev_b32 v{t5}, 16, v{t3}")
k(f"v_lshl_add_u32 v{t5}, v{t1}, 8, v{t5}")
k(f"v_lshl_add_u32 v{vStN}, v{t2}, 4, v{t5}")
k(f"s_lshl_b32 s{sH0}, s{sH0}, 1")
k(f"s_mul_i32 s{sT2}, s{sC}, 86")
k(f"s_add_u32 s{sH0}, s{sH0}, s{sT2}")
k(f"s_lshl_b32 s{sH0}, s{sH0}, 10")
k(f"s_add_u32 s{sH0}, s{sH0}, {WH:#x}")
k(f"s_add_u32 s{sH2}, s{sH0}, 4096")
k(f"s_cmp_lt_u32 s{sCt}, 11")
k(f"s_cselect_b32 s{sH2}, s{sH2}, {BIG:#x}")
k(f"s_lshl_b32 s{sGst}, s{sC}, 11")
k(f"s_lshl_b32 s{sT2}, s{sCt}, 7")
k(f"s_add_u32 s{sGst}, s{sGst}, s{sT2}")
k(f"s_add_u32 s{sGst}, s{sGst}, {WG:#x}")
k(f"s_lshl_b32 s{sF1}, s{sRt}, 4")
k(f"s_add_u32 s{sF1}, s{sF1}, s{sCt}")
k(f"s_lshl_b32 s{sF1}, s{sF1}, 2")
k(f"s_add_u32 s{sF1}, s{sF1}, s{sW}")
k(f"s_lshl_b32 s{sF1}, s{sF1}, 7")
k(f"s_add_u32 s{sF1}, s{sF1}, {F1:#x}")
k(f"s_lshl_b32 s{sF3}, s{sJ}, 3")
k(f"s_add_u32 s{sF3}, s{sF3}, s{sXcd}")
k(f"s_lshl_b32 s{sF3}, s{sF3}, 2")
k(f"s_add_u32 s{sF3}, s{sF3}, s{sW}")
k(f"s_lshl_b32 s{sF3}, s{sF3}, 7")
k(f"s_add_u32 s{sF3}, s{sF3}, {F3:#x}")
k(f"v_mov_b32 v{t5}, {BIG:#x}")
k(f"v_cmp_eq_u32 vcc, 63, v{vL}")
k(f"v_cndmask_b32 v{vOwn}, v{t5}, 0, vcc")
k(f"s_lshl_b32 s{sC}, s{sJ}, 6")
k(f"s_lshl_b32 s{sC+1}, s{sXcd}, 3")
k(f"s_add_u32 s{sC}, s{sC}, s{sC+1}")
k(f"s_lshl_b32 s{sT2}, s{sW}, 1")
k(f"s_add_u32 s{sQoff}, s{sC}, s{sT2}")
k(f"s_lshl_b32 s{sQoff}, s{sQoff}, 10")
k(f"s_lshl_b32 s{sT3}, s{sW}, 2")
k(f"s_add_u32 s{sKoff}, s{sC}, s{sT3}")
k(f"s_lshl_b32 s{sKoff}, s{sKoff}, 10")
k(f"s_add_u32 s{sKoff}, s{sKoff}, {WK - 8192:#x}")
k(f"s_add_u32 s{sVoff}, s{sKoff}, {WV - WK:#x}")
k(f"s_add_u32 s{sT3}, s{sT3}, s{sC+1}")
k(f"s_cmp_ge_u32 s{sT3}, 8")
k(f"s_cselect_b32 s{sKoff}, s{sKoff}, {BIG:#x}")
k(f"s_cselect_b32 s{sVoff}, s{sVoff}, {BIG:#x}")
k(f"s_cselect_b32 s{sT3}, 0x3f803f80, 0")
k(f"s_mov_b32 s{sLo}, s{sT3}")
k(f"s_add_u32 s{sMk}, s{sMx}, {KB_}")
k(f"s_mul_i32 s{sMv}, s{sW}, 4160")
k(f"s_add_u32 s{sMv}, s{sMv}, {VB_}")
k(f"v_and_b32 v{t5}, 3, v{vL}")
k(f"v_mul_u32_u24 v{t5}, 1040, v{t5}")
k(f"v_add_u32 v{t5}, s{sMv}, v{t5}")
k(f"v_add_u32 v{vOnesA}, 1024, v{t5}")
k(f"s_lshl_b32 s{sT3}, s{sW}, 11")
k(f"v_add_u32 v{vKr}, s{sT3}, v{vL16}")
k(f"s_mul_i32 s{sT3}, s{sW}, 2080")
k(f"v_lshlrev_b32 v{t5}, 8, v{t1}")
k(f"v_lshl_add_u32 v{t5}, v{t2}, 4, v{t5}")
k(f"v_add_u32 v{t4}, 512, v{t5}")
k(f"v_cmp_eq_u32 vcc, 0, v{t3}")
k(f"v_mov_b32 v{vV1}, 1024")
k(f"v_cndmask_b32 v{vV0}, v{vV1}, v{t5}, vcc")
k(f"v_cndmask_b32 v{vV1}, v{vV1}, v{t4}, vcc")
k(f"v_add_u32 v{vV0}, s{sT3}, v{vV0}")
k(f"v_add_u32 v{vV1}, s{sT3}, v{vV1}")
k(f"s_add_u32 s{sT3}, s{sC+1}, s{sT2}")
k(f"s_sub_u32 s{sRel0}, 8, s{sT3}")
k(f"s_lshl_b32 s{sT3}, s{sT3}, 5")
k(f"s_add_u32 s{sT3}, s{sT3}, s{sJ}")
k(f"s_lshl_b32 s{sT3}, s{sT3}, 10")
k(f"s_add_u32 s{sOst}, s{sT3}, {WO:#x}")
k(f"s_add_u32 s{sOst+1}, s{sOst}, 32768")
k(f"s_lshl_b32 s{sC}, s{sXcd}, 1")
k(f"s_lshr_b32 s{sC+1}, s{sW}, 1")
k(f"s_add_u32 s{sC+1}, s{sC+1}, s{sC}")
k(f"s_lshl_b32 s{sC+1}, s{sC+1}, 6")
k(f"s_and_b32 s{sT3}, s{sJ}, 28")
k(f"s_add_u32 s{sC+1}, s{sC+1}, s{sT3}")
k(f"s_and_b32 s{sT2}, s{sT2}, 3")
k(f"s_add_u32 s{sC+1}, s{sC+1}, s{sT2}")
k(f"v_and_b32 v{t5}, 1, v{vL}")
k(f"v_add_u32 v{t5}, s{sC+1}, v{t5}")
k(f"s_add_u32 s{sC}, s{sC}, s{sW}")
k(f"s_sub_u32 s{sC}, s{sC}, 2")
k(f"s_lshl_b32 s{sC}, s{sC}, 6")
k(f"s_add_u32 s{sT2}, s{sC}, s{sT3}")
k(f"s_add_u32 s{sT2}, s{sT2}, 32")
k(f"s_lshl_b32 s{sT3}, s{sJ}, 1")
k(f"s_and_b32 s{sT3}, s{sT3}, 60")
k(f"s_add_u32 s{sT3}, s{sT3}, s{sC}")
k(f"s_sub_u32 s{sT3}, s{sT3}, 4")
k(f"v_add_u32 v{t4}, s{sT2}, v{vL}")
k(f"v_add_u32 v{t2}, s{sT3}, v{vL}")
k(f"v_cmp_gt_u32 vcc, 4, v{vL}")
k(f"s_cmp_lg_u32 s{sLo}, 0")
k(f"s_cselect_b32 s{sT2}, 8, 0")
k(f"v_cndmask_b32 v{t4}, v{t2}, v{t4}, vcc")
k(f"v_cmp_gt_u32 vcc, s{sT2}, v{vL}")
k(f"v_cndmask_b32 v{t4}, v{t5}, v{t4}, vcc")
k(f"v_lshlrev_b32 v{t4}, 7, v{t4}")
k(f"v_add_u32 v{vP1}, {F1:#x}, v{t4}")
k(f"v_lshlrev_b32 v{t5}, 2, v{t1}")
k(f"v_sub_u32 v{t5}, v{t0}, v{t5}")
k(f"v_mov_b32 v{t4}, {f32(-1e30):#x}")
for r in range(16):
    key = 8*(r//4) + r % 4
    k(f"v_cmp_le_i32 vcc, {key}, v{t5}")
    k(f"s_nop 1")
    k(f"v_cndmask_b32 v{vCd+r}, v{t4}, 0, vcc")
    k(f"v_cndmask_b32 v{vCf+r}, 0, v{t4}, vcc")
k(f"s_mov_b32 s{sNl2e}, {f32(-LOG2E):#x}")
k(f"s_mov_b32 s{sNl2e+1}, {f32(-LOG2E):#x}")
stamp("setup")
k.wait(vm="nonce")
stamp("nonce", True)
k(f"v_add_u32 v{vTag}, 1, v{vPoll}")
k(f"v_mov_b32 v{vTag+1}, v{vPoll+1}")
k(f"v_mov_b32 v{vTag+2}, 1")
k(f"v_mov_b32 v{vTag+3}, 0")
k(f"s_or_b32 s{sT2}, s2, s{sW}")
k(f"s_cmp_eq_u32 s{sT2}, 0")
k(f"s_cselect_b32 s{sT2}, 0, {BIG:#x}")
k(f"s_add_u32 s{sT3}, s{sT2}, {WN:#x}")
k.vmem(f"buffer_store_dwordx4 {vr(vTag,4)}, v{vOwn}, {sr(SDBG)}, s{sT2} offen sc1", "tagst")
k.vmem(f"buffer_store_dwordx2 {vr(vTag,2)}, v{vOwn}, {sr(SWS)}, s{sT3} offen sc1", "tagst")
k.wait(vm=["gate", "codepf"])
stamp("gatew", True)
gwf = gt
for i in range(4):
    k(f"v_lshlrev_b32 v{gwf+2*i}, 16, v{gw+i}")
    k(f"v_and_b32 v{gwf+2*i+1}, 0xffff0000, v{gw+i}")
z = [gt+8, gt+9]; p = gt+10
for row, gx in enumerate((gx0, gx1)):
    for i in range(4):
        k(f"v_lshlrev_b32 v{p+2*i}, 16, v{gx+i}")
        k(f"v_and_b32 v{p+2*i+1}, 0xffff0000, v{gx+i}")
    for i in range(8): k(f"v_mul_f32 v{p+i}, v{p+i}, v{gwf+i}")
    for i in range(4): k(f"v_cvt_pk_bf16_f32 v{gx+i}, v{p+2*i}, v{p+2*i+1}")
    for i in range(4):
        k(f"v_lshlrev_b32 v{p+2*i}, 16, v{gx+i}")
        k(f"v_and_b32 v{p+2*i+1}, 0xffff0000, v{gx+i}")
    for i in range(4): k(f"v_add_f32 v{p+i}, v{p+i}, v{p+4+i}")
    k(f"v_add_f32 v{p}, v{p}, v{p+2}")
    k(f"v_add_f32 v{p+1}, v{p+1}, v{p+3}")
    k(f"v_add_f32 v{z[row]}, v{p}, v{p+1}")
for m in ("row_shr:1 row_mask:0xf bank_mask:0xf bound_ctrl:0", "row_shr:2 row_mask:0xf bank_mask:0xf bound_ctrl:0",
          "row_shr:4 row_mask:0xf bank_mask:0xf bound_ctrl:0", "row_shr:8 row_mask:0xf bank_mask:0xf bound_ctrl:0",
          "row_bcast:15 row_mask:0xa bank_mask:0xf", "row_bcast:31 row_mask:0xc bank_mask:0xf"):
    for row in range(2): k(f"v_add_f32_dpp v{z[row]}, v{z[row]}, v{z[row]} {m}")
k(f"v_cvt_pk_bf16_f32 v{p}, v{z[0]}, v{z[1]}")
k(f"v_lshlrev_b32 v{z[0]}, 16, v{p}")
k(f"v_and_b32 v{z[1]}, 0xffff0000, v{p}")
for row in range(2): k(f"v_mul_f32 v{z[row]}, s{sNl2e}, v{z[row]}")
for row in range(2): k(f"v_exp_f32 v{z[row]}, v{z[row]}")
for row in range(2): k(f"v_add_f32 v{z[row]}, 1.0, v{z[row]}")
for row in range(2): k(f"v_rcp_f32 v{z[row]}, v{z[row]}")
k(f"v_cvt_pk_bf16_f32 v{p}, v{z[0]}, v{z[1]}")
k(f"v_lshlrev_b32 v{vG}, 16, v{p}")
k(f"v_and_b32 v{vG+2}, 0xffff0000, v{p}")
k(f"v_sub_f32 v{z[0]}, 1.0, v{vG}")
k(f"v_sub_f32 v{z[1]}, 1.0, v{vG+2}")
k(f"v_cvt_pk_bf16_f32 v{p}, v{z[0]}, v{z[1]}")
k(f"v_lshlrev_b32 v{vG+1}, 16, v{p}")
k(f"v_and_b32 v{vG+3}, 0xffff0000, v{p}")
for i in range(4): k(f"v_mov_b32 v{vOnes+i}, s{sLo}")
k(f"s_mov_b32 s{sLo}, {f32(2.0**-60):#x}")
k(f"s_mov_b32 s{sHi}, {f32(2.0**60):#x}")
k(f"s_mov_b32 s{sW3}, 0")

def tb(S_): return 12*S_ - 6
free_p1 = {39: 0, 15: tb(5), 19: tb(6), 23: tb(7)}
for u in (30, 31, 32): free_p1[u] = tb(9)
for s in range(6):
    for u in range(3): free_p1[W1SLOT[s]//U + u] = tb(8+s+2)
units_p1 = sorted(free_p1, key=lambda u: free_p1[u])
units_att = [W1SLOT[6]//U + u for u in range(3)] + [W1SLOT[7]//U + u for u in range(3)]
units_p3 = list(range(4, 9))
w3_unit = units_p1 + units_att + units_p3
NPRE = len(units_p1) + len(units_att)
bars3 = CFG["bars3"]
w3_time3 = {}
nxt = len(w3_unit); src = 0
for j in range(NPRE, nxt): w3_time3[j] = 0
while nxt < 59:
    b = min(x for x in bars3 if x >= src + 1)
    w3_unit.append(w3_unit[src]); w3_time3[nxt] = b; nxt += 1; src += 1
print("w3 units", w3_unit, "times", w3_time3, file=sys.stderr)

def job_w3(j):
    def f():
        if j == 43: k(f"s_mov_b32 s{sW3}, 0")
        k(f"s_add_u32 m0, s{sM3}, {w3_unit[j]*U}")
        if j < 43: k.vmem(f"buffer_load_dwordx4 v{vW3a}, {sr(SW2)}, s{sW3} offen lds", ("w3", j))
        else: k.vmem(f"buffer_load_dwordx4 v{vW3b}, {sr(SWO)}, s{sW3} offen lds", ("w3", j))
        k(f"s_add_u32 s{sW3}, s{sW3}, 16384")
    return f

mem = deque()
for t, js in ((10, job_x(6)), (tb(2), job_w(5, "wq")), (22, job_x(7)), (tb(3), job_w(6, "wq")), (tb(4), job_w(7, "wq")),
              (tb(4), job_w(0, "w1")), (tb(5), job_w(1, "w1")), (tb(5), job_w(2, "w1")), (tb(6), job_w(3, "w1")), (tb(6), job_w(4, "w1")),
              (tb(7), job_w(5, "w1")), (tb(7), job_w(6, "w1")), (tb(8), job_w(7, "w1"))):
    for j in js: mem.append((t, j))
w3q = deque((max(free_p1[u], 93), job_w3(j)) for j, u in enumerate(units_p1))

def p1_reads(g, b):
    S_ = g // 4
    slot = WQSLOT[S_] if S_ < 8 else W1SLOT[S_-8]
    if b == 0 and g < 32:
        a = XSLOT[S_]
        k.ds(f"ds_read_b128 {ar(4*g,4)}, v{vXr + 4*(a >> 16) + g % 4} offset:{a & 0xFFFF}", ("xf", g))
    for e in range(2):
        r, o = win(vWr, slot + (g % 4)*3072 + e*768 + b*64)
        d = vWF + (g % 3)*12 + 4*b + 2*e
        k.ds(f"ds_read_b64_tr_b16 {vr(d,2)}, v{r} offset:{o}", ("wf", g, b))
def stage_tags(S_): return [("x", S_), ("wq", S_)] if S_ < 8 else [("w1", S_-8)]

valu = deque()
for b in range(3):
    a = accQ + 16*b
    for h in range(2):
        if b < 2:
            for i in range(8): valu.append(f"v_mul_f32 v{a+8*h+i}, s{sScale}, v{a+8*h+i}")
        for i in range(4): valu.append(f"v_cvt_pk_bf16_f32 v{a+8*h+i}, v{a+8*h+2*i}, v{a+8*h+2*i+1}")
        if b < 2: valu.append(("st", f"buffer_store_dwordx4 {vr(a+8*h,4)}, v{vL16}, {sr(SWS)}, s{sQKVst+2*b+h} offen sc1"))
        else: valu.append(("st", f"buffer_store_dwordx4 {vr(a+8*h,4)}, v{vStN}, {sr(SWS)}, s{sQKVst+4} offen offset:{512*h} sc1"))
valu.append(("st", f"buffer_store_dwordx4 {vr(vG,4)}, v{vOwn}, {sr(SWS)}, s{sGst} offen sc1"))

def tag_check():
    stamp("tag_pre")
    k.wait(vm="tagld")
    k(f"v_cmp_eq_u32 vcc, 0, v{vTag+2}")
    k("s_cbranch_vccnz TAG_slow")
    k.label("TAG_back")
    stamp("tag_post", True)
    def ool():
        k.label("TAG_slow")
        k(f"s_mov_b32 s{sCnt}, {CFG['spin']}")
        k.label("TAG_loop")
        k(f"buffer_load_dwordx4 {vr(vTag,4)}, off, {sr(SDBG)}, 0 sc1")
        k("s_waitcnt vmcnt(0)")
        k(f"v_cmp_eq_u32 vcc, 0, v{vTag+2}")
        k("s_cbranch_vccz TAG_back")
        k(f"s_sub_u32 s{sCnt}, s{sCnt}, 1")
        k(f"s_cmp_lg_u32 s{sCnt}, 0")
        k("s_cbranch_scc1 TAG_loop")
        k("s_branch TAG_back")
    outofline.append(ool)

kvq = deque()
def kv_jobs():
    def fk(i):
        def f():
            if i == 0: k(f"s_mov_b32 m0, s{sMk}")
            k.vmem(f"buffer_load_dwordx4 v{vL16}, {sr(SWS)}, s{sKoff} offen offset:{1024*i} sc1 lds", "kv")
        return f
    def fv(i):
        def f():
            k(f"s_add_u32 m0, s{sMv}, {16*i}")
            k.vmem(f"buffer_load_dwordx4 v{vL16}, {sr(SWS)}, s{sVoff} offen offset:{1024*i} sc1 lds", "kv")
        return f
    def fq(q):
        def f(): k.vmem(f"buffer_load_dwordx4 {vr(vQ+4*q,4)}, v{vL16}, {sr(SWS)}, s{sQoff} offen offset:{1024*q} sc1", "kv")
        return f
    return [fk(i) for i in range(4)] + [fq(0), fq(1)] + [fv(i) for i in range(4)]

stamp("gate_done", True)
k.wait(vm=stage_tags(0))
k("s_barrier")
stamp("bar0", True)
for g in range(2):
    for b in range(3): p1_reads(g, b)
k(".p2align 3")
for g in range(64):
    for b in range(3):
        t = 3*g + b
        acc = (accQ if g < 32 else accH) + 16*b
        k.wait(lg=[("wf", g, b), ("xf", g)])
        wf = vr(vWF + (g % 3)*12 + 4*b, 4); xf = ar(4*(g % 32), 4)
        c = "0" if g % 32 == 0 else vr(acc, 16)
        if g < 32 and b == 2: k(f"v_mfma_f32_32x32x16_bf16 {vr(acc,16)}, {xf}, {wf}, {c}")
        else: k(f"v_mfma_f32_32x32x16_bf16 {vr(acc,16)}, {wf}, {xf}, {c}")
        if b == 0 and (g + 2) % 4 == 0 and g + 2 < 64:
            k.wait(vm=stage_tags((g + 2)//4))
            k("s_barrier")
        if g + 2 < 64: p1_reads(g + 2, b)
        did = False
        if t == CFG["T_TAG"]:
            k.vmem(f"buffer_load_dwordx4 {vr(vTag,4)}, off, {sr(SDBG)}, 0 sc1", "tagld"); did = True
        elif t == CFG["T_TAGCHK"]:
            tag_check(); did = True
        elif t == CFG["T_F1"]:
            assert not valu
            stamp("f1_pre")
            k.wait(vm="st1")
            stamp("f1_post", True)
            k.vmem(f"buffer_store_dwordx2 {vr(vTag,2)}, v{vOwn}, {sr(SWS)}, s{sF1} offen sc1", "f1"); did = True
        elif t == CFG["T_P1"]:
            k.vmem(f"buffer_load_dwordx2 {vr(vPoll,2)}, v{vP1}, {sr(SWS)}, 0 offen sc1", "p1"); did = True
        elif t == CFG["T_C1"]:
            poll_check("P1", vP1, "p1"); kvq.extend(kv_jobs()); did = True
            k.ds(f"ds_write_b128 v{vOnesA}, {vr(vOnes,4)}", "ones")
        if not did and mem and mem[0][0] <= t:
            mem.popleft()[1](); did = True
        if not did and kvq:
            kvq.popleft()(); did = True
        if not did and w3q and w3q[0][0] <= t and not (CFG["T_P1"] - 6 <= t <= CFG["T_C1"]) and t % 2 == 0:
            w3q.popleft()[1](); did = True
        if t >= 98:
            n = 0
            while valu and n < 3:
                it = valu[0]
                if isinstance(it, tuple):
                    if did: break
                    k.vmem(it[1], "st1"); did = True; n += 1
                else: k(it); n += 1
                valu.popleft()
        if t == 95: stamp("qkv")
assert not mem and not valu
while kvq: kvq.popleft()()
stamp("ffn1")
tmp = accQ
for b in range(3):
    a = accH + 16*b
    for i in range(8): k(f"v_pk_mul_f32 {vr(tmp+2*i,2)}, {vr(a+2*i,2)}, {sr(sNl2e,2)}")
    for i in range(16): k(f"v_exp_f32 v{tmp+i}, v{tmp+i}")
    for i in range(8): k(f"v_pk_add_f32 {vr(tmp+2*i,2)}, {vr(tmp+2*i,2)}, 1.0 op_sel_hi:[1,0]")
    for i in range(16): k(f"v_rcp_f32 v{tmp+i}, v{tmp+i}")
    for i in range(8): k(f"v_pk_mul_f32 {vr(a+2*i,2)}, {vr(a+2*i,2)}, {vr(tmp+2*i,2)}")
    for h in range(2):
        for i in range(4): k(f"v_cvt_pk_bf16_f32 v{a+8*h+i}, v{a+8*h+2*i}, v{a+8*h+2*i+1}")
        if b < 2: k.vmem(f"buffer_store_dwordx4 {vr(a+8*h,4)}, v{vL16}, {sr(SWS)}, s{sH0} offen offset:{2048*b+1024*h} sc1", "st2")
        else: k.vmem(f"buffer_store_dwordx4 {vr(a+8*h,4)}, v{vL16}, {sr(SWS)}, s{sH2} offen offset:{1024*h} sc1", "st2")
stamp("silu")

k.wait(vm="kv", lg="ones")
k("s_barrier")
stamp("kvbar", True)
tiles = [(0, 0)]
for i in range(1, 9): tiles += [(0, i), (1, i)]
tiles.append((1, 9))
def rdK(i): k.ds(f"ds_read_b128 {vr(aK+4*(i%2),4)}, v{vKr} offset:{KB_+1024*i}", ("k", i))
def rdV(i, t): k.ds(f"ds_read_b128 {vr(aV+8*(i%3)+4*t,4)}, v{vV0+t} offset:{VB_+1040*i}", ("v", i, t))
def mS(n):
    q, i = tiles[n]
    c = vr(vCf, 16) if i == q else vr(vCd, 16) if i == q + 8 else "0"
    k.wait(lg=("k", i))
    k(f"v_mfma_f32_32x32x16_bf16 {vr(aS+16*(n%2),16)}, {vr(aK+4*(i%2),4)}, {vr(vQ+4*q,4)}, {c}")
def mPV(n, t):
    q, i = tiles[n]
    o = vr(aO+16*q, 16)
    k.wait(lg=("v", i, t))
    k(f"v_mfma_f32_32x32x16_bf16 {o}, {vr(aV+8*(i%3)+4*t,4)}, {vr(aP+8*(n%2)+4*t,4)}, {'0' if (i == q and t == 0) else o}")
attq = deque(list(w3q) + [(0, job_w3(len(units_p1)+j)) for j in range(len(units_att))])
hq = deque()
def job_h(j):
    def f():
        if j and j % 4 == 0: k(f"s_add_u32 s{sHld}, s{sHld}, 4096")
        k.vmem(f"buffer_load_dwordx4 {ar(4*j,4)}, v{vL16}, {sr(SWS)}, s{sHld} offen offset:{1024*(j%4)} sc1", ("h", j))
    return f
gapn = [0]
def att_gap(ds):
    t = gapn[0]; gapn[0] += 1
    for f in ds: f()
    if t == CFG["A_F2"]:
        stamp("f2_pre")
        k.wait(vm="st2")
        stamp("f2_post", True)
        k(f"s_add_u32 s{sF1}, s{sF1}, {F2-F1:#x}")
        k.vmem(f"buffer_store_dwordx2 {vr(vTag,2)}, v{vOwn}, {sr(SWS)}, s{sF1} offen sc1", "f2")
    elif t == CFG["A_P2"]:
        assert not attq
        k.vmem(f"buffer_load_dwordx2 {vr(vPoll,2)}, v{vP2}, {sr(SWS)}, 0 offen sc1", "p2")
    elif t == CFG["A_C2"]:
        poll_check("P2", vP2, "p2")
        hq.extend(job_h(j) for j in range(43))
        k.vmem(f"buffer_load_dwordx2 {vr(vG3,2)}, v{vGl}, {sr(SWS)}, 0 offen sc1", "g3")
    elif attq: attq.popleft()[1]()
    else:
        for _ in range(CFG["A_HPER"]):
            if hq: hq.popleft()()
rdK(0); rdK(1); rdV(0, 0); rdV(0, 1)
mS(0)
k(".p2align 3")
for n in range(18):
    sb = aS + 16*(n % 2); pb = aP + 8*(n % 2)
    q, i = tiles[n]
    dsA, dsB = [], []
    if n + 1 < 18:
        qn, in_ = tiles[n + 1]
        if qn == 1 and in_ + 2 <= 9: dsA.append(lambda a=in_: rdK(a + 2))
        if n + 1 == 1: pass
    if n == 0: dsB += [lambda: rdV(1, 0), lambda: rdV(1, 1)]
    if q == 0 and i >= 1 and i + 1 <= 9: dsB += [lambda a=i: rdV(a + 1, 0), lambda a=i: rdV(a + 1, 1)]
    if n + 1 < 18:
        mS(n + 1)
        if n == 0: dsA.append(lambda: rdK(2))
        att_gap(dsA)
    for r in range(4): k(f"v_exp_f32 v{sb+r}, v{sb+r}")
    if n >= 1: mPV(n - 1, 0); att_gap([])
    for r in range(4, 8): k(f"v_exp_f32 v{sb+r}, v{sb+r}")
    if n >= 1: mPV(n - 1, 1)
    if n >= 1 or dsB: att_gap(dsB)
    for r in range(8, 16): k(f"v_exp_f32 v{sb+r}, v{sb+r}")
    for r in range(8): k(f"v_cvt_pk_bf16_f32 v{pb+r}, v{sb+2*r}, v{sb+2*r+1}")
mPV(17, 0); mPV(17, 1)
print("attention gaps", gapn[0], "h loads left", len(hq), file=sys.stderr)
k(f"v_cmp_gt_f32 vcc, s{sLo}, v{aO+8}")
k(f"v_cmp_nge_f32 {sr(sC,2)}, s{sHi}, v{aO+8}")
k(f"s_or_b64 {sr(sC,2)}, {sr(sC,2)}, vcc")
k(f"v_cmp_gt_f32 vcc, s{sLo}, v{aO+24}")
k(f"s_or_b64 {sr(sC,2)}, {sr(sC,2)}, vcc")
k(f"v_cmp_nge_f32 vcc, s{sHi}, v{aO+24}")
k(f"s_or_b64 vcc, {sr(sC,2)}, vcc")
if CFG["force_fallback"]: k("s_branch FB")
else: k("s_cbranch_scc1 FB")
k.label("FB_back")
for q in range(2):
    o = aO + 16*q
    k(f"v_rcp_f32 v{o+8}, v{o+8}")
    for i in range(8): k(f"v_mul_f32 v{o+i}, v{o+i}, v{o+8}")
    for i in range(4): k(f"v_cvt_pk_bf16_f32 v{o+i}, v{o+2*i}, v{o+2*i+1}")
    k.vmem(f"buffer_store_dwordx4 {vr(o,4)}, v{vL16}, {sr(SWS)}, s{sOst+q} offen sc1", "st3")

def fallback():
    vm_, vka, vva, vvb = vT, vT+1, vT+2, vT+3
    k.label("FB")
    k("s_nop 15")
    for q in range(2):
        o = aO + 16*q
        for ps in range(2):
            L = f"FB{q}{ps}"
            k(f"s_sub_i32 s{sRel}, s{sRel0}, {q}")
            k(f"s_max_i32 s{sRel}, s{sRel}, 0")
            if ps == 0: k(f"v_mov_b32 v{vm_}, {f32(-3e38):#x}")
            else:
                for r in range(16): k(f"v_mov_b32 v{o+r}, 0")
            k.label(L + "_loop")
            k(f"s_add_u32 s{sT0}, s{sRel}, {q}")
            k(f"s_lshl_b32 s{sT1}, s{sT0}, 10")
            k(f"v_add_u32 v{vka}, s{sT1}, v{vKr}")
            k(f"ds_read_b128 {vr(aK,4)}, v{vka} offset:{KB_}")
            if ps == 1:
                k(f"s_mul_i32 s{sT1}, s{sT0}, 1040")
                k(f"v_add_u32 v{vva}, s{sT1}, v{vV0}")
                k(f"v_add_u32 v{vvb}, s{sT1}, v{vV1}")
                k(f"ds_read_b128 {vr(aV,4)}, v{vva} offset:{VB_}")
                k(f"ds_read_b128 {vr(aV+4,4)}, v{vvb} offset:{VB_}")
            k(f"s_cmp_eq_u32 s{sRel}, 0")
            k(f"s_cbranch_scc1 {L}_far")
            k(f"s_cmp_eq_u32 s{sRel}, 8")
            k(f"s_cbranch_scc1 {L}_diag")
            k("s_waitcnt lgkmcnt(0)")
            k(f"v_mfma_f32_32x32x16_bf16 {vr(aS,16)}, {vr(aK,4)}, {vr(vQ+4*q,4)}, 0")
            k(f"s_branch {L}_go")
            k.label(L + "_far")
            k("s_waitcnt lgkmcnt(0)")
            k(f"v_mfma_f32_32x32x16_bf16 {vr(aS,16)}, {vr(aK,4)}, {vr(vQ+4*q,4)}, {vr(vCf,16)}")
            k(f"s_branch {L}_go")
            k.label(L + "_diag")
            k("s_waitcnt lgkmcnt(0)")
            k(f"v_mfma_f32_32x32x16_bf16 {vr(aS,16)}, {vr(aK,4)}, {vr(vQ+4*q,4)}, {vr(vCd,16)}")
            k.label(L + "_go")
            k("s_nop 15")
            if ps == 0:
                for r in range(8): k(f"v_max3_f32 v{vm_}, v{aS+2*r}, v{aS+2*r+1}, v{vm_}")
            else:
                for r in range(16): k(f"v_sub_f32 v{aS+r}, v{aS+r}, v{vm_}")
                for r in range(16): k(f"v_exp_f32 v{aS+r}, v{aS+r}")
                for r in range(8): k(f"v_cvt_pk_bf16_f32 v{aP+r}, v{aS+2*r}, v{aS+2*r+1}")
                k(f"v_mfma_f32_32x32x16_bf16 {vr(o,16)}, {vr(aV,4)}, {vr(aP,4)}, {vr(o,16)}")
                k(f"v_mfma_f32_32x32x16_bf16 {vr(o,16)}, {vr(aV+4,4)}, {vr(aP+4,4)}, {vr(o,16)}")
                k("s_nop 15")
            k(f"s_add_u32 s{sRel}, s{sRel}, 1")
            k(f"s_cmp_le_u32 s{sRel}, 8")
            k(f"s_cbranch_scc1 {L}_loop")
            if ps == 0:
                k(f"v_mov_b32 v{vka}, v{vm_}")
                k(f"v_permlane32_swap_b32 v{vm_}, v{vka}")
                k(f"v_max_f32 v{vm_}, v{vm_}, v{vka}")
    k("s_nop 15")
    k("s_branch FB_back")
outofline.append(fallback)
stamp("att")

PD = 3
def p3_reads(j, lb):
    for e in range(2):
        r, o = win(vA + 3*lb, w3_unit[j]*U + e*1024)
        k.ds(f"ds_read_b64_tr_b16 {vr(a3F + (j % 4)*8 + 4*lb + 2*e, 2)}, v{r} offset:{o}", ("af", j, lb))
def job_o(j):
    def f():
        if j and j % 4 == 0: k(f"s_add_u32 s{sOld}, s{sOld}, 4096")
        k.vmem(f"buffer_load_dwordx4 {ar(172+4*j,4)}, v{vL16}, {sr(SWS)}, s{sOld} offen offset:{1024*(j%4)} sc1", ("o", j))
    return f
k.wait(vm=[("w3", j) for j in range(NPRE)])
k.wait_all(lg=True)
k("s_barrier")
stamp("p3bar", True)
visible = NPRE
w3r = deque((w3_time3[j], j) for j in range(NPRE, 59))
issued = NPRE
oq = deque()
scale_q = deque()
for j in range(PD):
    for lb in range(2): p3_reads(j, lb)
k(".p2align 3")
for j in range(59):
    for lb in range(2):
        t = 2*j + lb
        acc = (accB if j < 43 else accA) + 16*lb
        bf = ar(4*j, 4)
        k.wait(vm=[("h", j)] if j < 43 else [("o", j-43)], lg=("af", j, lb))
        c = "0" if j in (0, 43) else vr(acc, 16)
        k(f"v_mfma_f32_32x32x16_bf16 {vr(acc,16)}, {vr(a3F + (j % 4)*8 + 4*lb, 4)}, {bf}, {c}")
        if lb == 0 and j in bars3:
            nb = min([x for x in bars3 if x > j], default=59 + PD)
            upto = min(nb + PD, 59)
            assert issued >= upto, (j, issued, upto)
            k.wait(vm=[("w3", x) for x in range(upto)])
            k("s_barrier")
            visible = upto
        if j + PD < 59:
            assert j + PD < visible, (j, visible)
            p3_reads(j + PD, lb)
        if t == CFG["B_F3"]:
            stamp("f3_pre")
            k.wait(vm="st3")
            stamp("f3_post", True)
            k.vmem(f"buffer_store_dwordx2 {vr(vTag,2)}, v{vOwn}, {sr(SWS)}, s{sF3} offen sc1", "f3")
        elif t == CFG["B_P3"]:
            k.vmem(f"buffer_load_dwordx2 {vr(vPoll,2)}, v{vP3}, {sr(SWS)}, 0 offen sc1", "p3")
        elif t == CFG["B_C3"]:
            poll_check("P3", vP3, "p3"); oq.extend(job_o(x) for x in range(16))
        elif oq: oq.popleft()()
        elif hq and (lb == 0 or not (w3r and w3r[0][0] <= j)): hq.popleft()()
        elif w3r and w3r[0][0] <= j:
            job_w3(w3r.popleft()[1])(); issued += 1
        if j == 44 and lb == 0:
            k.wait(vm="g3")
            scale_q.extend(f"v_mul_f32 v{accB+i}, v{vG3+1}, v{accB+i}" for i in range(32))
        for _ in range(2):
            if scale_q: k(scale_q.popleft())
assert not hq and not oq and not w3r and not scale_q
stamp("p3")
for i in range(16, 32): k(f"v_fmac_f32 v{accB+i}, v{vG3}, v{accA+i}")
for i in range(4): k.ds(f"ds_write_b128 v{vEx}, {vr(accB+16+4*i,4)} offset:{EXU+1024*i}", "ex")
for i in range(16): k(f"v_fmac_f32 v{accB+i}, v{vG3}, v{accA+i}")
k.wait_all(lg=True)
k("s_barrier")
for i in range(4): k.ds(f"ds_read_b128 {vr(accA+4*i,4)}, v{vEx+1} offset:{EXU+1024*i}", ("exr", i))
for i in range(4):
    k.wait(lg=("exr", i))
    for j in range(4): k(f"v_add_f32 v{accB+4*i+j}, v{accB+4*i+j}, v{accA+4*i+j}")
    for j in range(2): k(f"v_cvt_pk_bf16_f32 v{accB+16+2*i+j}, v{accB+4*i+2*j}, v{accB+4*i+2*j+1}")
    if i % 2 == 1:
        pb = accB + 16 + 2*(i-1)
        k(f"v_permlane32_swap_b32 v{pb}, v{pb+2}")
        k(f"v_permlane32_swap_b32 v{pb+1}, v{pb+3}")
        k.vmem(f"buffer_store_dwordx4 {vr(pb,4)}, v{vOut}, {sr(SOUT)}, 0 offen offset:{16*(i-1)}", "out")
if CFG["stamps"]:
    k.wait_all(vm=True)
    stamp("end")
    k(f"s_lshl_b32 s{sT0}, s2, 2")
    k(f"s_add_u32 s{sT0}, s{sT0}, s{sW}")
    k(f"s_lshl_b32 s{sT0}, s{sT0}, 7")
    k(f"s_add_u32 s{sT0}, s{sT0}, {WD:#x}")
    k(f"s_memrealtime s[98:99]")
    k.wait_all(lg=True)
    i = nstamp[0]
    k(f"v_writelane_b32 v{vSt}, s96, 30")
    k(f"v_writelane_b32 v{vSt}, s98, 31")
    k(f"v_writelane_b32 v{vSt}, s{sStamp+2*((i-1)%2)}, {i-1}")
    k(f"v_lshlrev_b32 v{vT}, 2, v{vL}")
    k(f"v_cmp_gt_u32 vcc, 32, v{vL}")
    k(f"s_and_saveexec_b64 {sr(sC,2)}, vcc")
    k(f"buffer_store_dword v{vSt}, v{vT}, {sr(SWS)}, s{sT0} offen")
    if CFG["dbgst"]:
        k(f"v_readlane_b32 s{sT0}, v{vSt}, 0")
        k(f"s_lshl_b32 s{sT2}, s2, 2")
        k(f"s_add_u32 s{sT2}, s{sT2}, s{sW}")
        k(f"s_cmp_eq_u32 s{sT2}, {CFG['dbgwg']*4}")
        k(f"s_cselect_b32 s{sT2}, 0, {BIG:#x}")
        for n, nm in enumerate(CFG["dbgst"]):
            k(f"v_readlane_b32 s{sT1}, v{vSt}, {stnames.index(nm)}")
            k("s_nop 3")
            k(f"s_sub_u32 s{sT1}, s{sT1}, s{sT0}")
            k(f"v_mov_b32 v{vT+1}, s{sT1}")
            k(f"buffer_store_dword v{vT+1}, off, {sr(SDBG)}, s{sT2} offset:{16+4*n}")
    if CFG["amp"]:
        a, b, K = CFG["amp"]
        if a == "fixed": k(f"s_mov_b32 s{sT1}, {b}")
        else:
            k(f"v_readlane_b32 s{sT0}, v{vSt}, {stnames.index(a)}")
            k(f"v_readlane_b32 s{sT1}, v{vSt}, {stnames.index(b)}")
            k("s_nop 3")
            k(f"s_sub_u32 s{sT1}, s{sT1}, s{sT0}")
            k(f"s_mul_i32 s{sT1}, s{sT1}, {K}")
            k(f"s_min_u32 s{sT1}, s{sT1}, 2000000")
        k(f"v_readlane_b32 s{sT0}, v{vSt}, {i-1}")
        k("s_nop 3")
        k.label("AMP")
        k(f"s_memtime {sr(sStamp,2)}")
        k("s_waitcnt lgkmcnt(0)")
        k(f"s_sub_u32 s{sT2}, s{sStamp}, s{sT0}")
        k(f"s_cmp_lt_u32 s{sT2}, s{sT1}")
        k("s_cbranch_scc1 AMP")
k.label("L_end")
k("s_endpgm")
for f in outofline: f()

hdr = open("gated_mix__sliding_block__dense_activation_silu__prompt.s.ref").read().split("\n")
hdr = [l for l in hdr if l.startswith(";") and "@launch" not in l]
out = "\n".join(hdr) + f"\n; @launch grid=(256,1,1) block=(256,1,1) lds={LDS_BYTES}\n"
out += f""".amdgcn_target "amdgcn-amd-amdhsa--gfx950"
.text
.globl {KNAME}
.p2align 8
.type {KNAME},@function
""" + k.text() + f"""
.section .rodata,"a"
.p2align 6
.amdhsa_kernel {KNAME}
  .amdhsa_next_free_vgpr 512
  .amdhsa_next_free_sgpr 102
  .amdhsa_accum_offset 256
  .amdhsa_group_segment_fixed_size 0
  .amdhsa_kernarg_size 80
  .amdhsa_user_sgpr_count 2
  .amdhsa_user_sgpr_kernarg_segment_ptr 1
  .amdhsa_system_sgpr_workgroup_id_x 1
.end_amdhsa_kernel
"""
open(sys.argv[1], "w").write(out)
open(sys.argv[1][:-2] + ".names", "w").write(" ".join(stnames))
print("nops inserted:", k.nops, k.log[:40], file=sys.stderr)
```

```python
import sys, struct
from collections import deque
from kb import KB, Regs

KNAME = "gated_mix__sliding_block__dense_activation_silu__prompt_kernel"
CFG = dict(
    stamps=False,
    spin=1 << 16,
    npre=150,
    nfill=2,
    A_ld=[0, 2, 4, 6, 8, 10, 12, 14],
    C_ld=[0, 2, 4, 6, 9, 11, 13, 15, 17],
    A_ff2=[4, 6, 8, 10], A_ff3=[10, 13, 16, 19],
    A_w3=22, A_w3step=2,
    A_F1=28, A_P1=48, A_C1=1,
    C_w3=122, C_w3step=2,
    C_tag=140, C_P1=0, C_C1=2,
    T_F2=8, T_P2=15, T_C2=24,
    T_HPER=1,
    B_F3=24, B_P3=40, B_C3=60,
    bars3=[12, 26, 35, 47],
    force_fallback=False,
    perm=True, rot=True,
    amp=None, dbgst=None, dbgwg=0,
)
for a in sys.argv[2:]:
    kk_, v_ = a.split("=")
    assert kk_ in CFG, kk_
    CFG[kk_] = eval(v_)

def f32(x): return struct.unpack("<I", struct.pack("<f", x))[0]
LOG2E = 1.4426950408889634
WQ, WK, WV, WH, WO, WG, WF, WN, WD = 0x0, 0x200000, 0x400000, 0x600000, 0xC00000, 0xE00000, 0xE40000, 0xF00000, 0xF10000
WS_REC = 0x1000000
BIG = 0x40000000
F1, F2, F3 = WF, WF + 0x20000, WF + 0x40000
KB_, VB_, TB = 0, 16384, 32768
SU = [49152 + 16384*i for i in range(7)]
XSLOT = [0, 16384, SU[4]]
LDS_BYTES = 163840
G3 = [(0, 4, SU[5], 0), (4, 4, SU[6], 0), (8, 4, SU[4], 0), (12, 4, SU[0], 0), (16, 4, SU[1], 0), (20, 3, TB, 1),
      (23, 4, SU[2], 0), (27, 4, SU[3], 0), (31, 4, KB_, 0), (35, 4, VB_, 0), (39, 4, SU[5], 0),
      (43, 4, SU[6], 0), (47, 4, SU[4], 0), (51, 4, SU[0], 0), (55, 4, SU[1], 0)]
EXB = SU[2]
def g3_of(step):
    for gi, (s0, n, base, sl) in enumerate(G3):
        if s0 <= step < s0 + n: return gi, base, sl + step - s0

k = KB()
SX, SWQ, SW1, SW2, SWO, SWS, SOUT, SDBG, SGATE = 4, 8, 12, 16, 20, 24, 28, 32, 36
S = Regs(40, 96 if CFG["stamps"] else 100)
def sa(n, c=1, al=1): return S.alloc(n, c, al)
sC = sa("c", 2, 2); sScale = sa("scale", 2, 2); sNl2e = sa("nl2e", 2, 2)
sW = sa("w"); sXcd = sa("xcd"); sJ = sa("j"); sRt = sa("rt"); sC1 = sa("c1"); sCb = sa("cb")
sT0 = sa("t0"); sT1 = sa("t1"); sT2 = sa("t2"); sT3 = sa("t3"); sTw = sa("tw")
sPerm = sa("perm"); sMx = sa("mx"); sM2 = sa("m2"); sM1 = sa("m1"); sChk = sa("chk")
sKx = sa("kx"); sKq = sa("kq"); sK1 = sa("k1")
sQst = sa("qst"); sH0 = sa("h0"); sGst = sa("gst"); sF1 = sa("f1"); sF3 = sa("f3")
sKoff = sa("koff"); sVoff = sa("voff"); sQoff = sa("qoff"); sMv = sa("mv"); sOst = sa("ost")
sHb = sa("hb"); sHe = sa("he"); sHg = sa("hg"); sWb = sa("wb"); sWe = sa("we"); sWg = sa("wg")
sWo = sa("wo"); sOl = sa("ol"); sOb = sa("ob")
sRel0 = sa("rel0"); sLo = sa("lo"); sHi = sa("hi")
sRel = sKq
sCnt = sa("cnt"); sTg = sa("tg"); sNon = sa("non")
sStamp = sa("stamp", 4, 2) if CFG["stamps"] else None
NST = 30

V = Regs(1, 256)
def va(n, c=1, al=1): return V.alloc(n, c, al)
vL = va("lane"); vL16 = va("l16"); vSt = va("stamps")
vT = va("tmp", 8, 4)
vX = va("x", 4); vW = va("w", 4); vF = va("f", 2); vXr = va("xr", 8); vWr = va("wr", 4); vFr = va("fr", 2)
vStN = va("stn"); vOwn = va("own")
vP1 = va("p1"); vP2 = va("p2"); vP3 = va("p3")
vKr = va("kr"); vV0 = va("v0"); vV1 = va("v1"); vOnesA = va("onesa")
vW3 = va("w3", 4); vA = va("a", 6); vGl = va("gl"); vOut = va("out"); vEx = va("ex", 2)
vTag = va("tag", 4, 4); vPoll = va("poll", 2, 2); vG3 = va("g3", 2, 2)
vOnes = va("ones", 4, 4)
vQ = va("q", 8, 4)
vCd = va("cd", 16, 4); vCf = va("cf", 16, 4)
ACC = va("acc", 96, 4); vWF = va("wf", 32, 4)
print("VGPR high water", V.next, "SGPR", S.next, file=sys.stderr)
aS = ACC; aP = ACC + 32; aO = ACC + 48
aK = vWF; aV = vWF + 8
accB = ACC; accA = ACC + 32; a3F = vCd

def vr(b, n): return f"v[{b}:{b+n-1}]"
def ar(b, n): return f"a[{b}:{b+n-1}]"
def sr(b, n=4): return f"s[{b}:{b+n-1}]"

nstamp = [0]
stnames = ["start"]
def stamp(name, sync=False):
    if not CFG["stamps"]: return
    i = nstamp[0]; nstamp[0] += 1
    if i < len(stnames): assert stnames[i] == name, (stnames, i, name)
    else: stnames.append(name)
    if sync: k.wait_all(lg=True)
    assert i < NST
    k(f"s_memtime {sr(sStamp+2*(i%2),2)}")
    if i: k(f"v_writelane_b32 v{vSt}, s{sStamp+2*((i-1)%2)}, {i-1}")

outofline = []
def slow_loop(name, load, cmp):
    def ool():
        k.label(f"{name}_slow")
        k(f"s_mov_b32 s{sCnt}, {CFG['spin']}")
        k.label(f"{name}_loop")
        k(load)
        k("s_waitcnt vmcnt(0)")
        k(cmp)
        k(f"s_cbranch_vccz {name}_back")
        k(f"s_sub_u32 s{sCnt}, s{sCnt}, 1")
        k(f"s_cmp_lg_u32 s{sCnt}, 0")
        k(f"s_cbranch_scc1 {name}_loop")
        k(f"s_branch {name}_back")
    outofline.append(ool)
def poll_check(name, stn, vaddr, tag):
    stamp(stn + "_pre")
    k.wait(vm=tag)
    cmp = f"v_cmp_ne_u64 vcc, {vr(vPoll,2)}, {vr(vTag,2)}"
    k(cmp)
    k(f"s_cbranch_vccnz {name}_slow")
    k.label(f"{name}_back")
    stamp(stn + "_post", True)
    slow_loop(name, f"buffer_load_dwordx2 {vr(vPoll,2)}, v{vaddr}, {sr(SWS)}, 0 offen sc1", cmp)
def tag_check(name):
    stamp("tag_pre")
    k.wait(vm="tagld")
    cmp = f"v_cmp_eq_u32 vcc, 0, v{vTag+2}"
    k(cmp)
    k(f"s_cbranch_vccnz {name}_slow")
    k.label(f"{name}_back")
    stamp("tag_post", True)
    slow_loop(name, f"buffer_load_dwordx4 {vr(vTag,4)}, off, {sr(SDBG)}, 0 sc1", cmp)

m0cur = [None]
def set_m0(sreg, imm):
    if m0cur[0] == (sreg, imm): return
    m0cur[0] = (sreg, imm)
    if imm: k(f"s_add_u32 m0, s{sreg}, {imm}")
    else: k(f"s_mov_b32 m0, s{sreg}")

t0, t1, t2, t3, t4, t5, t6, t7 = range(vT, vT + 8)
k.label(KNAME)
k("s_cmp_ge_u32 s2, 256")
k("s_cbranch_scc1 L_end")
for srd, off in ((SX, 0), (SWQ, 8), (SW1, 32), (SWS, 72)):
    k(f"s_load_dwordx2 {sr(srd,2)}, s[0:1], {off}")
if CFG["stamps"]:
    k(f"s_memtime {sr(sStamp,2)}")
    k(f"s_memrealtime s[96:97]")
    nstamp[0] = 1
k(f"s_getpc_b64 {sr(sC,2)}")
k.label("L_pc")
k(f"s_lshr_b32 s{sJ}, s2, 3")
k(f"v_lshrrev_b32 v{t1}, 3, v0")
k(f"s_lshl_b32 s{sT0}, s{sJ}, 5")
k(f"v_add_lshl_u32 v{t1}, v{t1}, s{sT0}, 7")
k(f"v_min_u32 v{t1}, L_last-L_pc, v{t1}")
k.vmem(f"global_load_dword v{vG3}, v{t1}, {sr(sC,2)}", "codepf")
for srd, off in ((SGATE, 48), (SDBG, 64), (SW2, 40), (SWO, 16), (SOUT, 56)):
    k(f"s_load_dwordx2 {sr(srd,2)}, s[0:1], {off}")
k(f"v_lshrrev_b32 v{t0}, 6, v0")
k(f"v_and_b32 v{vL}, 63, v0")
k(f"v_readfirstlane_b32 s{sW}, v{t0}")
k(f"s_and_b32 s{sXcd}, s2, 7")
k(f"s_and_b32 s{sC1}, s{sJ}, 3")
k(f"s_and_b32 s{sCb}, s{sXcd}, 3")
k(f"s_lshr_b32 s{sT0}, s{sJ}, 2")
k(f"s_and_b32 s{sRt}, s{sXcd}, 4")
k(f"s_lshl1_add_u32 s{sRt}, s{sRt}, s{sT0}")
k(f"s_lshl1_add_u32 s{sT0}, s{sC1}, s{sT0}")
k(f"s_and_b32 s{sT0}, s{sT0}, 7")
k(f"s_cmp_eq_u32 s{sT0}, 6")
k(f"s_cselect_b32 s{sT1}, 15, 0x1ef")
k(f"s_cmp_eq_u32 s{sT0}, 7")
k(f"s_cselect_b32 s{sT1}, 0, s{sT1}")
if not CFG["perm"]: k(f"s_mov_b32 s{sT1}, 0")
k(f"s_lshl_b32 s{sT0}, s{sT0}, 2")
k(f"s_lshl_b32 s{sT1}, s{sT1}, s{sT0}")
k(f"s_sub_u32 s{sPerm}, 0x76543210, s{sT1}")
k(f"s_lshl_b32 s{sMx}, s{sW}, 12")
k(f"s_lshl2_add_u32 s{sT0}, s{sRt}, s{sW}")
k(f"s_lshl_b32 s{sT0}, s{sT0}, 15")
k(f"v_lshrrev_b32 v{t0}, 3, v{vL}")
k(f"v_lshrrev_b32 v{t1}, 4, v{vL}")
k(f"v_lshl_add_u32 v{t0}, v{t0}, 10, s{sT0}")
k(f"v_xor_b32 v{t2}, v{t1}, v{vL}")
k(f"v_and_b32 v{t2}, 7, v{t2}")
k(f"v_lshl_add_u32 v{vX}, v{t2}, 4, v{t0}")
k(f"v_xor_b32 v{vX+1}, 64, v{vX}")
k(f"v_add_u32 v{vX+1}, 7168, v{vX+1}")
k(f"v_add_u32 v{vX+2}, 14336, v{vX}")
k(f"v_add_u32 v{vX+3}, 14336, v{vX+1}")
k(f"s_lshl2_add_u32 s{sT0}, s{sC1}, s{sCb}")
k(f"s_lshl_b32 s{sT0}, s{sT0}, 8")
k(f"s_mul_i32 s{sT1}, s{sCb}, 320")
k(f"s_addk_i32 s{sT1}, 1536")
k(f"s_cmp_eq_u32 s{sC1}, 3")
k(f"s_cselect_b32 s{sT0}, s{sT1}, s{sT0}")
k(f"s_movk_i32 s{sT1}, 3072")
k(f"s_cselect_b32 s{sT1}, 2752, s{sT1}")
k(f"s_lshl_b32 s{sT2}, s{sW}, 4")
k(f"v_lshlrev_b32 v{t2}, 2, v{t1}")
k(f"v_xor_b32 v{t2}, v{t2}, v{vL}")
k(f"v_and_b32 v{t2}, 15, v{t2}")
k(f"v_add_u32 v{t1}, s{sT2}, v{t1}")
k(f"v_lshl_add_u32 v{t2}, v{t2}, 4, s{sT0}")
k(f"s_lshl_b32 s{sT2}, s{sT1}, 2")
k(f"s_addk_i32 s{sT2}, -1024")
k(f"v_mad_u32_u24 v{vW}, v{t1}, s{sT1}, v{t2}")
k(f"s_lshl_b32 s{sChk}, s{sT1}, 6")
for q in range(1, 4): k(f"v_add_u32 v{vW+q}, s{sT2}, v{vW+q-1}")
k(f"s_lshl_b32 s{SWQ+2}, s{sT1}, 9")
k(f"s_mov_b32 s{SX+2}, {2048*1024:#x}")
k(f"s_mov_b32 s{SX+3}, 0x20000")
k(f"s_mov_b32 s{SWQ+3}, s{SX+3}")
k(f"s_mov_b32 s{SWS+2}, {WS_REC:#x}")
k(f"s_mov_b32 s{SWS+3}, s{SX+3}")
k(f"s_or_b32 s{sT0}, s2, s{sW}")
k(f"s_cmp_eq_u32 s{sT0}, 0")
k(f"s_cselect_b32 s{sTg}, 0, {BIG:#x}")
k(f"s_add_u32 s{sNon}, s{sTg}, {WN:#x}")

def stage_off(s):
    k(f"s_bfe_u32 s{sTw}, s{sPerm}, {4*s + (3 << 16):#x}")
    k(f"s_lshl_b32 s{sKx}, s{sTw}, 7")
    k(f"s_mul_i32 s{sKq}, s{sTw}, s{sChk}")
def ld_x(s, p):
    set_m0(sMx, XSLOT[s % 3])
    k.vmem(f"buffer_load_dwordx4 v{vX+p}, {sr(SX)}, s{sKx} offen offset:{1024*p} lds", ("x", s))
def ld_w(s, q):
    set_m0(sMx, SU[s % 4])
    k.vmem(f"buffer_load_dwordx4 v{vW+q}, {sr(SWQ)}, s{sKq} offen offset:{1024*q} lds", ("w", s))
stage_off(0)
set_m0(sMx, XSLOT[0])
k(f"s_cmp_eq_u32 s{sC1}, 3")
k.wait_all(lg=True)
k(f"s_cselect_b32 s{SWQ}, s{SW1}, s{SWQ}")
k(f"s_cselect_b32 s{SWQ+1}, s{SW1+1}, s{SWQ+1}")
stamp("karg", True)
for p in range(4): ld_x(0, p)
for q in range(4): ld_w(0, q)
k.vmem(f"buffer_load_dwordx2 {vr(vPoll,2)}, off, {sr(SWS)}, s{sNon} sc1", "nonce")
stamp("issued")

setup = []
def u(x): setup.append(x)
def ug(*xs): setup.append(list(xs))
u(f"v_lshlrev_b32 v{vL16}, 4, v{vL}")
u(f"v_and_b32 v{t0}, 31, v{vL}")
u(f"v_lshrrev_b32 v{t1}, 5, v{vL}")
u(f"v_bfe_u32 v{t2}, v{vL}, 1, 3")
u(f"v_xor_b32 v{t2}, v{t2}, v{t1}")
u(f"v_lshlrev_b32 v{t2}, 4, v{t2}")
u(f"v_lshl_add_u32 v{t2}, v{t0}, 7, v{t2}")
u(f"v_add_u32 v{vXr}, s{sMx}, v{t2}")
for j in range(1, 4): u(f"v_xor_b32 v{vXr+j}, {32*j}, v{vXr}")
for j in range(4): u(f"v_add_u32 v{vXr+4+j}, {XSLOT[2]}, v{vXr+j}")
u(f"v_bfe_u32 v{t2}, v{vL}, 2, 2")
u(f"v_bfe_u32 v{t3}, v{vL}, 4, 1")
u(f"v_and_b32 v{t4}, 3, v{vL}")
u(f"v_lshlrev_b32 v{t4}, 3, v{t4}")
u(f"v_lshl_add_u32 v{t4}, v{t3}, 5, v{t4}")
u(f"v_lshl_add_u32 v{t5}, v{t1}, 3, v{t2}")
u(f"v_lshl_add_u32 v{t6}, v{t5}, 2, v{t2}")
u(f"v_lshl_add_u32 v{t6}, v{t6}, 6, v{t4}")
u(f"v_add_u32 v{vWr}, {SU[0]}, v{t6}")
for b in range(1, 4): u(f"v_xor_b32 v{vWr+b}, {64*b}, v{vWr}")
u(f"s_lshl_b32 s{sM2}, s{sW}, 11")
u(f"s_lshl_b32 s{sM1}, s{sW}, 10")
for srd, n in ((SGATE, 1024), (SW1, 512*2752), (SDBG, 256), (SW2, 1376*1024), (SWO, 512*1024), (SOUT, 2048*1024)):
    u(f"s_mov_b32 s{srd+2}, {n:#x}")
    u(f"s_mov_b32 s{srd+3}, s{SX+3}")
u(f"v_lshrrev_b32 v{t6}, 1, v{t2}")
u(f"v_lshl_add_u32 v{t6}, v{t5}, 1, v{t6}")
u(f"v_lshl_add_u32 v{t6}, v{t6}, 6, v{t4}")
u(f"v_add_u32 v{vFr}, {SU[0]}, v{t6}")
u(f"v_xor_b32 v{vFr+1}, 64, v{vFr}")
u(f"v_lshl_add_u32 v{t6}, v{t5}, 6, v{t4}")
u(f"v_add_u32 v{vStN}, {TB}, v{t6}")
u(f"v_lshlrev_b32 v{t6}, 2, v{t3}")
u(f"v_xor_b32 v{t6}, v{t6}, v{vL}")
u(f"v_and_b32 v{t6}, 7, v{t6}")
u(f"v_lshlrev_b32 v{t6}, 4, v{t6}")
u(f"v_lshrrev_b32 v{t7}, 3, v{vL}")
u(f"v_lshl_add_u32 v{vW3}, v{t7}, 10, v{t6}")
u(f"s_lshl_b32 s{sT0}, s{sW}, 4")
u(f"v_add_u32 v{t7}, s{sT0}, v{t7}")
u(f"s_mul_i32 s{sT1}, s{sCb}, 3")
u(f"s_add_u32 s{sT1}, s{sT1}, s{sC1}")
u(f"s_lshl_b32 s{sT2}, s{sT1}, 7")
u(f"v_add_u32 v{t6}, s{sT2}, v{t6}")
u(f"s_movk_i32 s{sT3}, 2752")
u(f"v_mad_u32_u24 v{vF}, v{t7}, s{sT3}, v{t6}")
u(f"v_lshrrev_b32 v{t7}, 2, v{vL}")
u(f"v_add_u32 v{t7}, s{sT0}, v{t7}")
u(f"v_and_b32 v{t6}, 3, v{vL}")
u(f"s_mul_i32 s{sT2}, s{sCb}, 320")
u(f"s_addk_i32 s{sT2}, 1792")
u(f"v_lshl_add_u32 v{t6}, v{t6}, 4, s{sT2}")
u(f"v_mad_u32_u24 v{vF+1}, v{t7}, s{sT3}, v{t6}")
NEED_B0 = len(setup)
u(f"s_lshl_b32 s{sT1}, s{sT1}, 1")
u(f"s_mul_i32 s{sT2}, s{sCb}, 5")
u(f"s_add_u32 s{sT2}, s{sT2}, 24")
ug(f"s_cmp_eq_u32 s{sC1}, 3", f"s_cselect_b32 s{sT1}, s{sT2}, s{sT1}")
u(f"s_lshl2_add_u32 s{sC}, s{sRt}, s{sW}")
u(f"s_mul_i32 s{sT2}, s{sC}, 43")
u(f"s_add_u32 s{sT1}, s{sT1}, s{sT2}")
u(f"s_lshl_b32 s{sT1}, s{sT1}, 11")
u(f"s_add_u32 s{sH0}, s{sT1}, {WH:#x}")
u(f"s_lshl_b32 s{sGst}, s{sC}, 8")
u(f"s_add_u32 s{sGst}, s{sGst}, {WG:#x}")
u(f"v_mov_b32 v{t5}, {BIG:#x}")
u(f"v_cmp_eq_u32 vcc, 63, v{vL}")
u(f"s_lshl_b32 s{sT2}, s{sC1}, 21")
u(f"s_lshl_b32 s{sT3}, s{sCb}, 19")
u(f"v_cndmask_b32 v{vOwn}, v{t5}, 0, vcc")
u(f"s_add_u32 s{sT2}, s{sT2}, s{sT3}")
u(f"s_lshl_b32 s{sT3}, s{sC}, 10")
u(f"s_add_u32 s{sQst}, s{sT2}, s{sT3}")
u(f"s_mov_b32 s{sScale}, {f32(0.25*LOG2E):#x}")
ug(f"s_cmp_eq_u32 s{sC1}, 0", f"s_cselect_b32 s{sScale}, s{sScale}, 1.0")
u(f"s_mov_b32 s{sScale+1}, s{sScale}")
u(f"s_mov_b32 s{sNl2e}, {f32(-LOG2E):#x}")
u(f"s_mov_b32 s{sNl2e+1}, s{sNl2e}")
u(f"s_lshl2_add_u32 s{sT2}, s{sRt}, s{sCb}")
u(f"s_lshl2_add_u32 s{sT2}, s{sT2}, s{sC1}")
u(f"s_lshl2_add_u32 s{sT2}, s{sT2}, s{sW}")
u(f"s_lshl_b32 s{sT2}, s{sT2}, 7")
u(f"s_add_u32 s{sF1}, s{sT2}, {F1:#x}")
u(f"s_lshl_b32 s{sT2}, s{sXcd}, 5")
u(f"s_add_u32 s{sT2}, s{sT2}, s{sJ}")
u(f"s_lshl2_add_u32 s{sT3}, s{sT2}, s{sW}")
u(f"s_lshl_b32 s{sT3}, s{sT3}, 7")
u(f"s_add_u32 s{sF3}, s{sT3}, {F3:#x}")
u(f"s_lshl2_add_u32 s{sT3}, s{sT2}, s{sW}")
u(f"s_lshl_b32 s{sQoff}, s{sT3}, 11")
u(f"s_lshl1_add_u32 s{sT3}, s{sT2}, s{sW}")
u(f"s_lshl_b32 s{sT3}, s{sT3}, 12")
u(f"s_add_u32 s{sKoff}, s{sT3}, {WK - 8192:#x}")
u(f"s_add_u32 s{sVoff}, s{sT3}, {WV - 8192:#x}")
u(f"s_and_b32 s{sC+1}, s{sJ}, 7")
u(f"s_lshl1_add_u32 s{sT3}, s{sC+1}, s{sW}")
ug(f"s_cmp_ge_u32 s{sT3}, 2", f"s_cselect_b32 s{sKoff}, s{sKoff}, {BIG:#x}", f"s_cselect_b32 s{sVoff}, s{sVoff}, {BIG:#x}",
   f"s_cselect_b32 s{sLo}, 0x3f803f80, 0", f"s_cselect_b32 s{sHi}, 8, 0")
for i in range(4): u(f"v_mov_b32 v{vOnes+i}, s{sLo}")
u(f"s_lshr_b32 s{sT0}, s{sXcd}, 1")
u(f"s_lshl_b32 s{sT0}, s{sT0}, 4")
u(f"s_lshl_b32 s{sT3}, s{sT3}, 6")
u(f"s_add_u32 s{sT3}, s{sT3}, s{sT0}")
u(f"s_sub_u32 s{sT3}, s{sT3}, 124")
u(f"v_add_u32 v{t5}, s{sT3}, v{vL}")
u(f"s_lshr_b32 s{sT1}, s{sW}, 1")
u(f"s_lshl1_add_u32 s{sT3}, s{sC+1}, s{sT1}")
u(f"s_lshl_b32 s{sT3}, s{sT3}, 6")
u(f"s_add_u32 s{sT3}, s{sT3}, s{sT0}")
u(f"s_and_b32 s{sT0}, s{sW}, 1")
u(f"s_lshl1_add_u32 s{sT3}, s{sT0}, s{sT3}")
u(f"v_and_b32 v{t6}, 1, v{vL}")
u(f"v_cmp_gt_u32 vcc, s{sHi}, v{vL}")
u(f"v_add_u32 v{t6}, s{sT3}, v{t6}")
u(f"s_mul_i32 s{sMv}, s{sW}, 4160")
u(f"v_cndmask_b32 v{t5}, v{t6}, v{t5}, vcc")
u(f"s_mov_b32 s{sT3}, {F1:#x}")
u(f"v_lshl_add_u32 v{vP1}, v{t5}, 7, s{sT3}")
u(f"s_add_u32 s{sMv}, s{sMv}, {VB_}")
u(f"v_and_b32 v{t5}, 3, v{vL}")
u(f"v_mul_u32_u24 v{t5}, 1040, v{t5}")
u(f"s_add_u32 s{sT3}, s{sMv}, 1024")
u(f"v_add_u32 v{vOnesA}, s{sT3}, v{t5}")
u(f"v_add_u32 v{vKr}, s{sM2}, v{vL16}")
u(f"v_and_b32 v{t6}, 15, v{vL}")
u(f"v_lshlrev_b32 v{t5}, 8, v{t1}")
u(f"v_lshl_add_u32 v{t5}, v{t6}, 4, v{t5}")
u(f"v_cmp_eq_u32 vcc, 0, v{t3}")
u(f"v_add_u32 v{t7}, 512, v{t5}")
u(f"v_mov_b32 v{vV1}, 1024")
u(f"s_mul_i32 s{sT3}, s{sW}, 2080")
u(f"v_cndmask_b32 v{vV0}, v{vV1}, v{t5}, vcc")
u(f"v_cndmask_b32 v{vV1}, v{vV1}, v{t7}, vcc")
u(f"v_add_u32 v{vV0}, s{sT3}, v{vV0}")
u(f"v_add_u32 v{vV1}, s{sT3}, v{vV1}")
u(f"v_lshl_add_u32 v{vQ}, v{t3}, 16, v{t5}")
u(f"s_lshl2_add_u32 s{sT3}, s{sC+1}, s{sW}")
u(f"s_lshl_b32 s{sRel0}, s{sT3}, 1")
u(f"s_sub_u32 s{sRel0}, 8, s{sRel0}")
u(f"s_lshl_b32 s{sT3}, s{sT3}, 6")
u(f"s_lshr_b32 s{sT2}, s{sT2}, 3")
u(f"s_add_u32 s{sT3}, s{sT3}, s{sT2}")
u(f"s_lshl_b32 s{sT3}, s{sT3}, 10")
u(f"s_add_u32 s{sOst}, s{sT3}, {WO:#x}")
u(f"s_lshl1_add_u32 s{sT2}, s{sT2}, s{sT0}")
u(f"s_lshl_b32 s{sT3}, s{sT0}, 13")
u(f"s_lshl_b32 s{sC}, s{sC+1}, 7")
u(f"s_add_u32 s{sT3}, s{sT3}, s{sC}")
u(f"v_add_u32 v{vW3}, s{sT3}, v{vW3}")
for i in range(1, 4): u(f"v_add_u32 v{vW3+i}, 15360, v{vW3+i-1}")
u(f"v_lshl_add_u32 v{t5}, v{t1}, 2, v{t2}")
u(f"v_lshrrev_b32 v{t7}, 1, v{t2}")
u(f"v_xor_b32 v{t7}, s{sT1}, v{t7}")
u(f"v_lshl_add_u32 v{t5}, v{t5}, 1, v{t7}")
u(f"v_lshl_add_u32 v{t5}, v{t5}, 6, v{t4}")
u(f"s_lshl_b32 s{sT3}, s{sT1}, 13")
u(f"v_add_u32 v{vA}, s{sT3}, v{t5}")
u(f"v_add_u32 v{vA+1}, 0x10000, v{vA}")
u(f"v_add_u32 v{vA+2}, 0x20000, v{vA}")
for j in range(3): u(f"v_xor_b32 v{vA+3+j}, 64, v{vA+j}")
u(f"s_lshl_b32 s{sT3}, s{sT2}, 15")
u(f"s_add_u32 s{sC}, s{sC}, s{sT3}")
u(f"s_add_u32 s{sOb}, s{sT3}, {WO:#x}")
u(f"s_lshl_b32 s{sT3}, s{sT1}, 6")
u(f"s_add_u32 s{sC}, s{sC}, s{sT3}")
u(f"v_lshlrev_b32 v{t5}, 10, v{t0}")
u(f"v_lshl_add_u32 v{t5}, v{t1}, 4, v{t5}")
u(f"v_add_u32 v{vOut}, s{sC}, v{t5}")
u(f"s_lshl_b32 s{sT3}, s{sT1}, 14")
u(f"s_add_u32 s{sOb}, s{sOb}, s{sT3}")
u(f"s_lshl_b32 s{sT3}, s{sT2}, 8")
u(f"s_add_u32 s{sT3}, s{sT3}, {WG:#x}")
u(f"v_lshl_add_u32 v{vGl}, v{t0}, 3, s{sT3}")
u(f"s_lshr_b32 s{sC}, s{sJ}, 3")
u(f"s_add_u32 s{sT3}, s{sC}, s{sC+1}")
u(f"s_and_b32 s{sOl}, s{sT3}, {3 if CFG['rot'] else 0}")
u(f"s_mov_b32 s{sWo}, s{sOl}")
u(f"s_add_u32 s{sT3}, s{sT3}, s{sC}")
u(f"s_mul_i32 s{sT3}, s{sT3}, {5 if CFG['rot'] else 0}")
u(f"s_lshr_b32 s{sT3}, s{sT3}, 2")
u(f"s_sub_u32 s{sC}, s{sT3}, 10")
ug(f"s_cmp_ge_u32 s{sT3}, 10", f"s_cselect_b32 s{sT3}, s{sC}, s{sT3}")
u(f"s_lshl1_add_u32 s{sC}, s{sT2}, s{sT1}")
u(f"s_mul_i32 s{sC}, s{sC}, {43*1024}")
u(f"s_add_u32 s{sHb}, s{sC}, {WH:#x}")
u(f"s_add_u32 s{sHe}, s{sHb}, {40*1024}")
u(f"s_lshl_b32 s{sC}, s{sT3}, 12")
u(f"s_add_u32 s{sHg}, s{sHb}, s{sC}")
u(f"s_mul_i32 s{sWb}, s{sT1}, {43*16384}")
u(f"s_add_u32 s{sWe}, s{sWb}, {40*16384}")
u(f"s_lshl_b32 s{sC}, s{sT3}, 16")
u(f"s_add_u32 s{sWg}, s{sWb}, s{sC}")
u(f"s_lshr_b32 s{sC}, s{sT2}, 2")
u(f"s_lshl_b32 s{sC}, s{sC}, 6")
u(f"s_and_b32 s{sT3}, s{sT2}, 3")
u(f"s_add_u32 s{sC}, s{sC}, s{sT3}")
u(f"s_lshl_b32 s{sC}, s{sC}, 7")
u(f"s_add_u32 s{sC}, s{sC}, {F2:#x}")
u(f"v_lshl_add_u32 v{vP2}, v{t6}, 9, s{sC}")
u(f"s_lshl_b32 s{sC}, s{sT1}, 9")
u(f"s_lshr_b32 s{sT3}, s{sT2}, 1")
u(f"s_add_u32 s{sC}, s{sC}, s{sT3}")
u(f"s_lshl_b32 s{sC}, s{sC}, 7")
u(f"s_add_u32 s{sC}, s{sC}, {F3:#x}")
u(f"v_lshl_add_u32 v{vP3}, v{t6}, 12, s{sC}")
u(f"s_add_u32 s{sC}, s{sMx}, {EXB}")
u(f"v_add_u32 v{vEx}, s{sC}, v{vL16}")
u(f"v_xor_b32 v{vEx+1}, 0x2000, v{vEx}")
u(f"v_lshlrev_b32 v{t5}, 2, v{t1}")
u(f"v_sub_u32 v{t5}, v{t0}, v{t5}")
u(f"v_cvt_f32_i32 v{t5}, v{t5}")
u(f"v_mov_b32 v{t7}, {f32(2e30):#x}")
for r in range(16):
    key = 8*(r//4) + r % 4
    u(f"v_fmaak_f32 v{vCf+r}, v{t5}, v{t7}, {f32((0.5-key)*2e30):#x}")
    u(f"v_min_f32 v{vCd+r}, 0, v{vCf+r}")
    u(f"v_min_f32 v{vCf+r}, 0, -v{vCf+r}")
u(f"s_mov_b32 s{sLo}, {f32(2.0**-60):#x}")
u(f"s_mov_b32 s{sHi}, {f32(2.0**60):#x}")
def emit(it):
    if callable(it): it()
    elif isinstance(it, list):
        for x in it: k(x)
    else: k(it)
NPRE = max(CFG["npre"], NEED_B0)
print("setup items", len(setup), "needed before B0", NEED_B0, file=sys.stderr)
for it in setup[:NPRE]: emit(it)
rest = setup[NPRE:]
def tag_out():
    k.wait(vm="nonce")
    k(f"v_add_u32 v{vTag}, 1, v{vPoll}")
    k(f"v_mov_b32 v{vTag+1}, v{vPoll+1}")
    k(f"v_mov_b32 v{vTag+2}, 1")
    k(f"v_mov_b32 v{vTag+3}, 0")
    k.vmem(f"buffer_store_dwordx4 {vr(vTag,4)}, v{vOwn}, {sr(SDBG)}, s{sTg} offen sc1", "tagst")
    k.vmem(f"buffer_store_dwordx2 {vr(vTag,2)}, v{vOwn}, {sr(SWS)}, s{sNon} offen sc1", "tagst")
assert NPRE >= NEED_B0 + 18
stamp("setup")
k(f"s_cmp_eq_u32 s{sC1}, 2")
k("s_cbranch_scc1 VAR_V")
k(f"s_lshl2_add_u32 s{sTw}, s{sC1}, s{sCb}")
k(f"s_cmp_eq_u32 s{sTw}, 15")
k("s_cbranch_scc1 VAR_G")
k(f"s_cmp_eq_u32 s{sC1}, 3")
k("s_cbranch_scc1 VAR_C")

def w3_job(step):
    gi, base, slot = g3_of(step)
    first = step == G3[gi][0]
    def f():
        if gi == 5:
            if first: k(f"s_sub_u32 s{sTw}, s{sWe}, 16384")
            so = sTw; srd = SW2
        elif gi < 11:
            if first and gi:
                k(f"s_add_u32 s{sWg}, s{sWg}, 65536")
                k(f"s_cmp_eq_u32 s{sWg}, s{sWe}")
                k(f"s_cselect_b32 s{sWg}, s{sWb}, s{sWg}")
            so = sWg; srd = SW2
        else:
            if first:
                if gi > 11:
                    k(f"s_add_u32 s{sWo}, s{sWo}, 1")
                    k(f"s_and_b32 s{sWo}, s{sWo}, 3")
                k(f"s_and_b32 s{sWb}, s{sW}, 2")
                k(f"s_lshl1_add_u32 s{sWb}, s{sWb}, s{sWo}")
                k(f"s_lshl_b32 s{sWb}, s{sWb}, 16")
            so = sWb; srd = SWO
        set_m0(sMx, base)
        k.vmem(f"buffer_load_dwordx4 v{vW3+slot}, {sr(srd)}, s{so} offen offset:{1024*slot} lds", ("w3", step))
    return f

def kv_jobs():
    js = []
    for i in range(4):
        def f(i=i):
            set_m0(sMx, KB_)
            k.vmem(f"buffer_load_dwordx4 v{vL16}, {sr(SWS)}, s{sKoff} offen offset:{1024*i} sc1 lds", "kv")
        js.append(f)
    for q in range(2):
        js.append(lambda q=q: k.vmem(f"buffer_load_dwordx4 {vr(vQ+4*q,4)}, v{vL16}, {sr(SWS)}, s{sQoff} offen offset:{1024*q} sc1", "kv"))
    for i in range(4):
        def f(i=i):
            set_m0(sMv, 16*i)
            k.vmem(f"buffer_load_dwordx4 v{vL16}, {sr(SWS)}, s{sVoff} offen offset:{1024*i} sc1 lds", "kv")
        js.append(f)
    return js

PDB = 6
def silu_block(a, tmp, soff, imm, extra):
    def ex(n=1):
        for _ in range(n):
            if extra: extra.popleft()()
    for i in range(8): k(f"v_pk_mul_f32 {vr(tmp+2*i,2)}, {vr(a+2*i,2)}, {sr(sNl2e,2)}")
    for i in range(16):
        k(f"v_exp_f32 v{tmp+i}, v{tmp+i}")
        if i % 4 == 3: ex()
    for i in range(8): k(f"v_pk_add_f32 {vr(tmp+2*i,2)}, {vr(tmp+2*i,2)}, 1.0 op_sel_hi:[1,0]")
    for i in range(16):
        k(f"v_rcp_f32 v{tmp+i}, v{tmp+i}")
        if i % 4 == 3: ex()
    for i in range(8): k(f"v_pk_mul_f32 {vr(a+2*i,2)}, {vr(a+2*i,2)}, {vr(tmp+2*i,2)}")
    ex(2)
    for h in range(2):
        for i in range(4): k(f"v_cvt_pk_bf16_f32 v{a+8*h+i}, v{a+8*h+2*i}, v{a+8*h+2*i+1}")
        k.vmem(f"buffer_store_dwordx4 {vr(a+8*h,4)}, v{vL16}, {sr(SWS)}, s{soff} offen offset:{imm+1024*h} sc1", "st2")

def variant(var):
    A = var in ("QK", "V")
    fill = deque(rest)
    items = []
    def w_reads(stage, st, b, buf):
        o = SU[stage % 4] - SU[0] + st*4096
        return [f"ds_read_b64_tr_b16 {vr(vWF+4*buf+2*e,2)}, v{vWr+b} offset:{o+1024*e}" for e in range(2)]
    def x_read(g):
        s = g // 4
        if s % 3 == 2: return f"ds_read_b128 {ar(4*g,4)}, v{vXr+4+g%4}"
        return f"ds_read_b128 {ar(4*g,4)}, v{vXr+g%4} offset:{XSLOT[s%3]}"
    def add(acc, g, first, reads, xr=None, bar=None, swap=False, pre=None):
        items.append(dict(acc=acc, g=g, first=first, reads=reads, xr=xr, bar=bar, swap=swap, pre=pre))
    def lag_item(g):
        buf = len(items) % 8
        if var == "C":
            o = (g//4 % 4)*4096 + (g % 4)*1024
            rd = [f"ds_read_b64_tr_b16 {vr(vWF+4*buf+2*e,2)}, v{vFr} offset:{o+256*e}" for e in range(2)]
            pre = None
        else:
            rd = [f"ds_read_b128 {vr(vWF+4*buf,4)}, v{vFr+1} offset:{32*(g%4)}"]
            pre = None
            if g % 4 == 0:
                pre = [f"s_bfe_u32 s{sTw}, s{sPerm}, {4*(g//4) + (3 << 16):#x}", f"s_lshl_b32 s{sTw}, s{sTw}, 7",
                       f"v_add_u32 v{vFr+1}, s{sTw}, v{vFr}"]
        add(ACC + 64, g, g == 0, rd, pre=pre, bar=None)
    for g in range(32):
        s = g // 4
        for b in range(4):
            bar = None
            if b == 0 and g % 4 == 0:
                bar = [("x", s), ("w", s)]
                if var == "C" and s: bar.append(("p", s-1))
                if var == "G" and s == 1: bar.append("gate")
            add(ACC + 16*b, g, g == 0, w_reads(s, g % 4, b, len(items) % 8), xr=x_read(g) if b == 0 else None, bar=bar, swap=(var == "V"))
        if not A and g >= 4: lag_item(g - 4)
    nq = len(items)
    if A:
        for g in range(32):
            stg = 8 + g // 8
            for b in range(2):
                o = SU[stg % 4] - SU[0] + (g % 8)*2048
                buf = len(items) % 8
                rd = [f"ds_read_b64_tr_b16 {vr(vWF+4*buf+2*e,2)}, v{vFr+b} offset:{o+512*e}" for e in range(2)]
                add(ACC + 64 + 16*b, g, g == 0, rd, bar=[("w", stg)] if (b == 0 and g % 8 == 0) else None)
    else:
        for g in range(28, 32): lag_item(g)
        items[nq]["bar"] = [("p", 7)] if var == "C" else []
        items[nq]["xwait"] = 31
    N = len(items)
    bar_at = [n for n, it in enumerate(items) if it["bar"] is not None]
    ev = {}
    def at(n, f): ev.setdefault(n, []).append(f)
    def ld_ff(i, x):
        half, q = x // 2, x % 2
        def f():
            if q == 0:
                k(f"s_bfe_u32 s{sTw}, s{sPerm}, {4*(2*i+half) + (3 << 16):#x}")
                k(f"s_mul_i32 s{sK1}, s{sTw}, {64*2752}")
            set_m0(sM2, SU[(8+i) % 4] + 8192*half)
            k.vmem(f"buffer_load_dwordx4 v{vF+q}, {sr(SW1)}, s{sK1} offen offset:{1024*q} lds", ("w", 8+i))
        return f
    def ld_p(s):
        def f():
            k(f"s_bfe_u32 s{sTw}, s{sPerm}, {4*s + (3 << 16):#x}")
            k(f"s_mul_i32 s{sK1}, s{sTw}, {64*2752}")
            set_m0(sM1, TB + 4096*(s % 4))
            k.vmem(f"buffer_load_dwordx4 v{vF}, {sr(SW1)}, s{sK1} offen lds", ("p", s))
        return f
    def stage_jobs(s):
        js = [lambda: (stage_off(s), ld_w(s, 0))] + [lambda q=q: ld_w(s, q) for q in range(1, 4)]
        if var == "C": js.append(ld_p(s-1))
        js += [lambda p=p: ld_x(s, p) for p in range(4)]
        return js
    for s in range(0, 6):
        g0 = bar_at[s] - PDB if s else 0
        js = stage_jobs(s + 2)
        pos = CFG["A_ld"] if (len(js) == 8) else CFG["C_ld"]
        if s == 0: pos = [p*10//16 for p in pos]
        for p_, j_ in zip(pos, js): at(g0 + p_, j_)
    at(bar_at[1] - PDB + 1, tag_out)
    if A:
        for i in range(2):
            for x in range(4): at(bar_at[6+i] - PDB + (2, 5, 9, 12)[x], ld_ff(i, x))
        for x in range(4): at(nq + CFG["A_ff2"][x], ld_ff(2, x))
        assert nq + CFG["A_ff3"][0] >= bar_at[9] - PDB
        for x in range(4): at(nq + CFG["A_ff3"][x], ld_ff(3, x))
        free3 = {0: 0, 1: 0, 2: bar_at[7] - PDB, 3: bar_at[10] - PDB, 4: bar_at[11] - PDB}
        w3start, w3step = nq + CFG["A_w3"], CFG["A_w3step"]
    else:
        if var == "C": at(bar_at[6] - PDB + 2, ld_p(7))
        free3 = {0: 0, 1: 0, 2: bar_at[7] - PDB, 3: bar_at[6] - PDB, 4: bar_at[7] - PDB}
        w3start, w3step = CFG["C_w3"], CFG["C_w3step"]
    late = deque()
    n_ = w3start
    quiet = set()
    if A: quiet = set(range(nq + CFG["A_P1"] - 3, nq + CFG["A_P1"] + 1)) | {nq + CFG["A_F1"]}
    for step in range(20):
        n_ = max(n_, free3[step // 4])
        while n_ in ev or n_ in quiet: n_ += 1
        if n_ < N: at(n_, w3_job(step))
        else: late.append(w3_job(step))
        n_ += w3step
    def f1_flag():
        tag_check("TAG" + var)
        k.vmem(f"buffer_store_dwordx2 {vr(vTag,2)}, v{vOwn}, {sr(SWS)}, s{sF1} offen sc1", "f1")
    def poll1(): k.vmem(f"buffer_load_dwordx2 {vr(vPoll,2)}, v{vP1}, {sr(SWS)}, 0 offen sc1", "p1")
    def tagld(): k.vmem(f"buffer_load_dwordx4 {vr(vTag,4)}, off, {sr(SDBG)}, 0 sc1", "tagld")
    if A:
        at(nq + CFG["A_F1"], f1_flag)
        at(nq + CFG["A_P1"], poll1)
    else:
        at(CFG["C_tag"], tagld)
    def reads(n):
        it = items[n]
        if it["bar"] is not None and n:
            k.wait(vm=it["bar"], lg=[("xf", it["xwait"])] if "xwait" in it else None)
            k("s_barrier")
        if it["pre"]:
            for x in it["pre"]: k(x)
        if it["xr"]: k.ds(it["xr"], ("xf", it["g"]))
        for r in it["reads"]: k.ds(r, ("wf", n))
    if var != "QK": k.label("VAR_" + var)
    m0cur[0] = None
    if A: k(f"v_add_u32 v{vF+1}, {8*2752-1024}, v{vF}")
    elif var == "C":
        k(f"v_mov_b32 v{vF}, v{vF+1}")
        k(f"v_mov_b32 v{vFr}, v{vStN}")
    else:
        k(f"v_lshrrev_b32 v{vFr}, 5, v{vL}")
        k(f"s_add_u32 s{sTw}, s{sM1}, {TB}")
        k(f"v_lshl_add_u32 v{vFr}, v{vFr}, 4, s{sTw}")
    for j_ in stage_jobs(1): j_()
    if var == "G":
        set_m0(sM1, TB)
        k.vmem(f"buffer_load_dwordx4 v{vL16}, {sr(SGATE)}, 0 offen lds", "gate")
    k.wait(vm=items[0]["bar"] + ["codepf"])
    k("s_barrier")
    stamp("bar0", True)
    for n in range(PDB): reads(n)
    k(".p2align 3")
    for n in range(N):
        it = items[n]
        if n % 2 == 0 or (A and n == nq):
            tags = [("wf", n), ("xf", it["g"])]
            if n + 1 < N: tags += [("wf", n+1), ("xf", items[n+1]["g"])]
            k.wait(lg=tags)
        wf = vr(vWF + 4*(n % 8), 4); xf = ar(4*it["g"], 4); acc = vr(it["acc"], 16)
        c = "0" if it["first"] else acc
        if it["swap"]: k(f"v_mfma_f32_32x32x16_bf16 {acc}, {xf}, {wf}, {c}")
        else: k(f"v_mfma_f32_32x32x16_bf16 {acc}, {wf}, {xf}, {c}")
        if n + PDB < N and not (A and n < nq <= n + PDB): reads(n + PDB)
        for f in ev.get(n, []): f()
        nf = CFG["nfill"] - (1 if n in ev else 0)
        for _ in range(nf):
            if fill: emit(fill.popleft())
        if A and n == nq - 1:
            assert not fill
            stamp("qkv")
            if var == "V": k(f"v_mov_b32 v{vStN}, v{vQ}")
            for b in range(4):
                a = ACC + 16*b
                if var == "QK":
                    for i in range(8): k(f"v_pk_mul_f32 {vr(a+2*i,2)}, {vr(a+2*i,2)}, {sr(sScale,2)}")
                for h in range(2):
                    for i in range(4): k(f"v_cvt_pk_bf16_f32 v{a+8*h+i}, v{a+8*h+2*i}, v{a+8*h+2*i+1}")
                    if var == "QK":
                        k.vmem(f"buffer_store_dwordx4 {vr(a+8*h,4)}, v{vL16}, {sr(SWS)}, s{sQst} offen sc1", "st1")
                        k(f"s_add_u32 s{sQst}, s{sQst}, 65536")
                    else:
                        k.vmem(f"buffer_store_dwordx4 {vr(a+8*h,4)}, v{vStN}, {sr(SWS)}, s{sQst} offen offset:{512*h} sc1", "st1")
                if var == "V": k(f"s_add_u32 s{sQst}, s{sQst}, 131072")
                if b == 2:
                    for x in range(PDB): reads(nq + x)
            tagld()
            stamp("epi")
    assert not fill
    if not A:
        stamp("qkv"); stamp("epi")
        tag_check("TAG" + var)
    stamp("ffn")
    nb = 2 if A else 5 if var == "C" else 4
    base = ACC + 64 if A else ACC
    tmp = ACC if A else ACC + 80
    pc, cc = (None, CFG["A_C1"]) if A else (CFG["C_P1"], CFG["C_C1"])
    extra = late
    def gate_epi():
        z = ACC + 64
        k(f"v_cvt_pk_bf16_f32 v{z}, v{z}, v{z}")
        k(f"v_lshlrev_b32 v{z}, 16, v{z}")
        k(f"v_mul_f32 v{z}, s{sNl2e}, v{z}")
        k(f"v_exp_f32 v{z}, v{z}")
        k(f"v_and_b32 v{z+4}, 31, v{vL}")
        k(f"v_add_f32 v{z}, 1.0, v{z}")
        k(f"v_rcp_f32 v{z}, v{z}")
        k(f"v_lshlrev_b32 v{z+4}, 3, v{z+4}")
        k(f"v_cvt_pk_bf16_f32 v{z}, v{z}, v{z}")
        k(f"v_lshlrev_b32 v{z+2}, 16, v{z}")
        k(f"v_sub_f32 v{z}, 1.0, v{z+2}")
        k(f"v_cvt_pk_bf16_f32 v{z}, v{z}, v{z}")
        k(f"v_lshlrev_b32 v{z+3}, 16, v{z}")
        k.vmem(f"buffer_store_dwordx2 {vr(z+2,2)}, v{z+4}, {sr(SWS)}, s{sGst} offen sc1", "st2")
    for b in range(nb + 1):
        if pc == b: poll1()
        if cc == b:
            while extra: extra.popleft()()
            poll_check("P1" + var, "P1", vP1, "p1")
            k.ds(f"ds_write_b128 v{vOnesA}, {vr(vOnes,4)}", "ones")
            extra.extend(kv_jobs())
        if b == nb: break
        silu_block(base + 16*b, tmp, sH0, 2048*(b % 2), extra)
        if b % 2 == 1: k(f"s_add_u32 s{sH0}, s{sH0}, 4096")
        if var == "G" and b == 0: gate_epi()
    while extra: extra.popleft()()
    stamp("silu")
    k.wait(vm="kv", lg="ones")
    k.wait_all(lg=True)
    if var != "G": k("s_branch JOIN")

vm0, lg0, ns0 = list(k.vm), list(k.lg), nstamp[0]
for var in ("QK", "V", "C", "G"):
    k.vm, k.lg, nstamp[0] = list(vm0), list(lg0), ns0
    variant(var)
k.label("JOIN")
k.vm = ["st2"]; k.lg = []; m0cur[0] = None

k("s_barrier")
stamp("kvbar", True)
tiles = [(0, 0)]
for i in range(1, 9): tiles += [(0, i), (1, i)]
tiles.append((1, 9))
def rdK(i): k.ds(f"ds_read_b128 {vr(aK+4*(i%2),4)}, v{vKr} offset:{KB_+1024*i}", ("k", i))
def rdV(i, t): k.ds(f"ds_read_b128 {vr(aV+8*(i%3)+4*t,4)}, v{vV0+t} offset:{VB_+1040*i}", ("v", i, t))
def mS(n):
    q, i = tiles[n]
    c = vr(vCf, 16) if i == q else vr(vCd, 16) if i == q + 8 else "0"
    k.wait(lg=("k", i))
    k(f"v_mfma_f32_32x32x16_bf16 {vr(aS+16*(n%2),16)}, {vr(aK+4*(i%2),4)}, {vr(vQ+4*q,4)}, {c}")
def mPV(n, t):
    q, i = tiles[n]
    o = vr(aO+16*q, 16)
    k.wait(lg=("v", i, t))
    k(f"v_mfma_f32_32x32x16_bf16 {o}, {vr(aV+8*(i%3)+4*t,4)}, {vr(aP+8*(n%2)+4*t,4)}, {'0' if (i == q and t == 0) else o}")
NPRE3 = 31
issued_set = set()
attq = deque(w3_job(s) for s in range(20, NPRE3))
hq = deque()
def h_job(j):
    gi, base, slot = g3_of(j)
    first = j == G3[gi][0]
    def f():
        if gi == 5: so = sHe; imm = 1024*(slot - 1)
        else:
            if first and gi:
                k(f"s_add_u32 s{sHg}, s{sHg}, 4096")
                k(f"s_cmp_eq_u32 s{sHg}, s{sHe}")
                k(f"s_cselect_b32 s{sHg}, s{sHb}, s{sHg}")
            so = sHg; imm = 1024*slot
        k.vmem(f"buffer_load_dwordx4 {ar(4*j,4)}, v{vL16}, {sr(SWS)}, s{so} offen offset:{imm} sc1", ("h", j))
        issued_set.add(("h", j))
    return f
gapn = [0]
def att_gap(ds):
    t = gapn[0]; gapn[0] += 1
    for f in ds: f()
    if t == CFG["T_F2"]:
        stamp("f2_pre")
        k.wait(vm="st2")
        stamp("f2_post", True)
        k(f"s_add_u32 s{sF1}, s{sF1}, {F2-F1:#x}")
        k.vmem(f"buffer_store_dwordx2 {vr(vTag,2)}, v{vOwn}, {sr(SWS)}, s{sF1} offen sc1", "f2")
    elif t == CFG["T_P2"]:
        assert not attq
        k.vmem(f"buffer_load_dwordx2 {vr(vPoll,2)}, v{vP2}, {sr(SWS)}, 0 offen sc1", "p2")
    elif t == CFG["T_C2"]:
        poll_check("P2", "P2", vP2, "p2")
        hq.extend(h_job(j) for j in range(43))
        hq.popleft()()
    elif attq: attq.popleft()()
    else:
        for _ in range(CFG["T_HPER"]):
            if hq: hq.popleft()()
rdK(0); rdK(1); rdV(0, 0); rdV(0, 1)
mS(0)
k(".p2align 3")
for n in range(18):
    sb = aS + 16*(n % 2); pb = aP + 8*(n % 2)
    q, i = tiles[n]
    dsA, dsB = [], []
    if n + 1 < 18:
        qn, in_ = tiles[n + 1]
        if qn == 1 and in_ + 2 <= 9: dsA.append(lambda a=in_: rdK(a + 2))
    if n == 0: dsB += [lambda: rdV(1, 0), lambda: rdV(1, 1)]
    if q == 0 and i >= 1 and i + 1 <= 9: dsB += [lambda a=i: rdV(a + 1, 0), lambda a=i: rdV(a + 1, 1)]
    if n + 1 < 18:
        mS(n + 1)
        if n == 0: dsA.append(lambda: rdK(2))
        att_gap(dsA)
    for r in range(4): k(f"v_exp_f32 v{sb+r}, v{sb+r}")
    if n >= 1: mPV(n - 1, 0); att_gap([])
    for r in range(4, 8): k(f"v_exp_f32 v{sb+r}, v{sb+r}")
    if n >= 1: mPV(n - 1, 1)
    if n >= 1 or dsB: att_gap(dsB)
    for r in range(8, 16): k(f"v_exp_f32 v{sb+r}, v{sb+r}")
    for r in range(8): k(f"v_cvt_pk_bf16_f32 v{pb+r}, v{sb+2*r}, v{sb+2*r+1}")
mPV(17, 0); mPV(17, 1)
print("attention gaps", gapn[0], "h loads left", len(hq), file=sys.stderr)
k(f"v_cmp_gt_f32 vcc, s{sLo}, v{aO+8}")
k(f"v_cmp_nge_f32 {sr(sC,2)}, s{sHi}, v{aO+8}")
k(f"s_or_b64 {sr(sC,2)}, {sr(sC,2)}, vcc")
k(f"v_cmp_gt_f32 vcc, s{sLo}, v{aO+24}")
k(f"s_or_b64 {sr(sC,2)}, {sr(sC,2)}, vcc")
k(f"v_cmp_nge_f32 vcc, s{sHi}, v{aO+24}")
k(f"s_or_b64 vcc, {sr(sC,2)}, vcc")
if CFG["force_fallback"]: k("s_branch FB")
else: k("s_cbranch_scc1 FB")
k.label("FB_back")
for q in range(2):
    o = aO + 16*q
    k(f"v_rcp_f32 v{o+8}, v{o+8}")
    if q: k(f"s_add_u32 s{sOst}, s{sOst}, 32768")
    for i in range(8): k(f"v_mul_f32 v{o+i}, v{o+i}, v{o+8}")
    for i in range(4): k(f"v_cvt_pk_bf16_f32 v{o+i}, v{o+2*i}, v{o+2*i+1}")
    k.vmem(f"buffer_store_dwordx4 {vr(o,4)}, v{vL16}, {sr(SWS)}, s{sOst} offen sc1", "st3")

def fallback():
    vm_, vka, vva, vvb = vT, vT+1, vT+2, vT+3
    k.label("FB")
    k("s_nop 15")
    for q in range(2):
        o = aO + 16*q
        for ps in range(2):
            L = f"FB{q}{ps}"
            k(f"s_sub_i32 s{sRel}, s{sRel0}, {q}")
            k(f"s_max_i32 s{sRel}, s{sRel}, 0")
            if ps == 0: k(f"v_mov_b32 v{vm_}, {f32(-3e38):#x}")
            else:
                for r in range(16): k(f"v_mov_b32 v{o+r}, 0")
            k.label(L + "_loop")
            k(f"s_add_u32 s{sT0}, s{sRel}, {q}")
            k(f"s_lshl_b32 s{sT1}, s{sT0}, 10")
            k(f"v_add_u32 v{vka}, s{sT1}, v{vKr}")
            k(f"ds_read_b128 {vr(aK,4)}, v{vka} offset:{KB_}")
            if ps == 1:
                k(f"s_mul_i32 s{sT1}, s{sT0}, 1040")
                k(f"v_add_u32 v{vva}, s{sT1}, v{vV0}")
                k(f"v_add_u32 v{vvb}, s{sT1}, v{vV1}")
                k(f"ds_read_b128 {vr(aV,4)}, v{vva} offset:{VB_}")
                k(f"ds_read_b128 {vr(aV+4,4)}, v{vvb} offset:{VB_}")
            k(f"s_cmp_eq_u32 s{sRel}, 0")
            k(f"s_cbranch_scc1 {L}_far")
            k(f"s_cmp_eq_u32 s{sRel}, 8")
            k(f"s_cbranch_scc1 {L}_diag")
            k("s_waitcnt lgkmcnt(0)")
            k(f"v_mfma_f32_32x32x16_bf16 {vr(aS,16)}, {vr(aK,4)}, {vr(vQ+4*q,4)}, 0")
            k(f"s_branch {L}_go")
            k.label(L + "_far")
            k("s_waitcnt lgkmcnt(0)")
            k(f"v_mfma_f32_32x32x16_bf16 {vr(aS,16)}, {vr(aK,4)}, {vr(vQ+4*q,4)}, {vr(vCf,16)}")
            k(f"s_branch {L}_go")
            k.label(L + "_diag")
            k("s_waitcnt lgkmcnt(0)")
            k(f"v_mfma_f32_32x32x16_bf16 {vr(aS,16)}, {vr(aK,4)}, {vr(vQ+4*q,4)}, {vr(vCd,16)}")
            k.label(L + "_go")
            k("s_nop 15")
            if ps == 0:
                for r in range(8): k(f"v_max3_f32 v{vm_}, v{aS+2*r}, v{aS+2*r+1}, v{vm_}")
            else:
                for r in range(16): k(f"v_sub_f32 v{aS+r}, v{aS+r}, v{vm_}")
                for r in range(16): k(f"v_exp_f32 v{aS+r}, v{aS+r}")
                for r in range(8): k(f"v_cvt_pk_bf16_f32 v{aP+r}, v{aS+2*r}, v{aS+2*r+1}")
                k(f"v_mfma_f32_32x32x16_bf16 {vr(o,16)}, {vr(aV,4)}, {vr(aP,4)}, {vr(o,16)}")
                k(f"v_mfma_f32_32x32x16_bf16 {vr(o,16)}, {vr(aV+4,4)}, {vr(aP+4,4)}, {vr(o,16)}")
                k("s_nop 15")
            k(f"s_add_u32 s{sRel}, s{sRel}, 1")
            k(f"s_cmp_le_u32 s{sRel}, 8")
            k(f"s_cbranch_scc1 {L}_loop")
            if ps == 0:
                k(f"v_mov_b32 v{vka}, v{vm_}")
                k(f"v_permlane32_swap_b32 v{vm_}, v{vka}")
                k(f"v_max_f32 v{vm_}, v{vm_}, v{vka}")
    k("s_nop 15")
    k("s_branch FB_back")
outofline.append(fallback)
stamp("att")

PD = 3
bars3 = CFG["bars3"]
def p3_reads(j, lb):
    gi, base, slot = g3_of(j)
    for e in range(2):
        a = base + 4096*e + 1024*slot
        k.ds(f"ds_read_b64_tr_b16 {vr(a3F + (j % 4)*8 + 4*lb + 2*e, 2)}, v{vA + 3*lb + (a >> 16)} offset:{a & 0xFFFF}", ("af", j, lb))
def o_job(j):
    def f():
        if j % 4 == 0:
            if j:
                k(f"s_add_u32 s{sOl}, s{sOl}, 1")
                k(f"s_and_b32 s{sOl}, s{sOl}, 3")
            k(f"s_lshl_b32 s{sTw}, s{sOl}, 12")
            k(f"s_add_u32 s{sTw}, s{sTw}, s{sOb}")
        k.vmem(f"buffer_load_dwordx4 {ar(172+4*j,4)}, v{vL16}, {sr(SWS)}, s{sTw} offen offset:{1024*(j%4)} sc1", ("o", j))
        issued_set.add(("o", j))
    return f
k.wait(vm=[("w3", j) for j in range(NPRE3)])
k.wait_all(lg=True)
k("s_barrier")
stamp("p3bar", True)
avail = {}; need = {}
for gi in range(8, 15):
    s0, n, base, sl = G3[gi]
    prev = [g for g in range(gi) if G3[g][2] == base]
    avail[gi] = min(b for b in bars3 if b >= G3[prev[-1]][0] + G3[prev[-1]][1]) if prev else -1
    need[gi] = max(b for b in bars3 if b <= s0 - PD)
    assert avail[gi] < need[gi]
print("p3 groups avail", avail, "need", need, file=sys.stderr)
w3r = deque((avail[g3_of(j)[0]], need[g3_of(j)[0]], j) for j in range(NPRE3, 59))
hleft = 43 - len(hq)
issued = NPRE3
oq = deque(); scale_q = deque()
g3done = False
for j in range(PD):
    for lb in range(2): p3_reads(j, lb)
k(".p2align 3")
for j in range(59):
    for lb in range(2):
        t = 2*j + lb
        acc = (accB if j < 43 else accA) + 16*lb
        if lb == 0:
            assert (("h", j) if j < 43 else ("o", j-43)) in issued_set, j
            k.wait(vm=[("h", j)] if j < 43 else [("o", j-43)], lg=[("af", j, 0), ("af", j, 1)])
        c = "0" if j in (0, 43) else vr(acc, 16)
        k(f"v_mfma_f32_32x32x16_bf16 {vr(acc,16)}, {vr(a3F + (j % 4)*8 + 4*lb, 4)}, {ar(4*j,4)}, {c}")
        if lb == 0 and j in bars3:
            want = [x for x in range(NPRE3, 59) if need[g3_of(x)[0]] <= j]
            assert not want or issued > max(want), (j, issued, want)
            k.wait(vm=[("w3", x) for x in want])
            k("s_barrier")
        if j + PD < 59: p3_reads(j + PD, lb)
        w3ok = w3r and w3r[0][0] <= j
        if t == CFG["B_F3"]:
            stamp("f3_pre")
            k.wait(vm="st3")
            stamp("f3_post", True)
            k.vmem(f"buffer_store_dwordx2 {vr(vTag,2)}, v{vOwn}, {sr(SWS)}, s{sF3} offen sc1", "f3")
        elif t == CFG["B_P3"]:
            k.vmem(f"buffer_load_dwordx2 {vr(vPoll,2)}, v{vP3}, {sr(SWS)}, 0 offen sc1", "p3")
        elif t == CFG["B_C3"]:
            poll_check("P3", "P3", vP3, "p3"); oq.extend(o_job(x) for x in range(16))
            oq.popleft()()
        elif oq and not (w3ok and w3r[0][1] <= 43): oq.popleft()()
        elif hq and not (w3ok and w3r[0][1] < hleft): hq.popleft()(); hleft += 1
        elif w3ok:
            w3_job(w3r.popleft()[2])(); issued += 1
        elif not g3done and not hq:
            k.vmem(f"buffer_load_dwordx2 {vr(vG3,2)}, v{vGl}, {sr(SWS)}, 0 offen sc1", "g3"); g3done = True
        if j == 44 and lb == 0:
            assert g3done
            k.wait(vm="g3")
            scale_q.extend(f"v_mul_f32 v{accB+i}, v{vG3+1}, v{accB+i}" for i in range(32))
        for _ in range(2):
            if scale_q: k(scale_q.popleft())
assert not hq and not oq and not w3r and not scale_q
stamp("p3")
for i in range(16, 32): k(f"v_fmac_f32 v{accB+i}, v{vG3}, v{accA+i}")
for i in range(4): k.ds(f"ds_write_b128 v{vEx}, {vr(accB+16+4*i,4)} offset:{1024*i}", "ex")
for i in range(16): k(f"v_fmac_f32 v{accB+i}, v{vG3}, v{accA+i}")
k.wait_all(lg=True)
k("s_barrier")
for i in range(4): k.ds(f"ds_read_b128 {vr(accA+4*i,4)}, v{vEx+1} offset:{1024*i}", ("exr", i))
for i in range(4):
    k.wait(lg=("exr", i))
    for j in range(4): k(f"v_add_f32 v{accB+4*i+j}, v{accB+4*i+j}, v{accA+4*i+j}")
    for j in range(2): k(f"v_cvt_pk_bf16_f32 v{accB+16+2*i+j}, v{accB+4*i+2*j}, v{accB+4*i+2*j+1}")
    if i % 2 == 1:
        pb = accB + 16 + 2*(i-1)
        k(f"v_permlane32_swap_b32 v{pb}, v{pb+2}")
        k(f"v_permlane32_swap_b32 v{pb+1}, v{pb+3}")
        k.vmem(f"buffer_store_dwordx4 {vr(pb,4)}, v{vOut}, {sr(SOUT)}, 0 offen offset:{16*(i-1)}", "out")
if CFG["stamps"]:
    k.wait_all(vm=True)
    stamp("end")
    k(f"s_lshl_b32 s{sT0}, s2, 2")
    k(f"s_add_u32 s{sT0}, s{sT0}, s{sW}")
    k(f"s_lshl_b32 s{sT0}, s{sT0}, 7")
    k(f"s_add_u32 s{sT0}, s{sT0}, {WD:#x}")
    k(f"s_memrealtime s[98:99]")
    k.wait_all(lg=True)
    i = nstamp[0]
    k(f"v_writelane_b32 v{vSt}, s96, 30")
    k(f"v_writelane_b32 v{vSt}, s98, 31")
    k(f"v_writelane_b32 v{vSt}, s{sStamp+2*((i-1)%2)}, {i-1}")
    k(f"v_lshlrev_b32 v{vT}, 2, v{vL}")
    k(f"v_cmp_gt_u32 vcc, 32, v{vL}")
    k(f"s_and_saveexec_b64 {sr(sC,2)}, vcc")
    k(f"buffer_store_dword v{vSt}, v{vT}, {sr(SWS)}, s{sT0} offen")
    if CFG["amp"]:
        a, b, K = CFG["amp"]
        if a == "fixed": k(f"s_mov_b32 s{sT1}, {b}")
        else:
            k(f"v_readlane_b32 s{sT0}, v{vSt}, {stnames.index(a)}")
            k(f"v_readlane_b32 s{sT1}, v{vSt}, {stnames.index(b)}")
            k("s_nop 3")
            k(f"s_sub_u32 s{sT1}, s{sT1}, s{sT0}")
            k(f"s_mul_i32 s{sT1}, s{sT1}, {K}")
            k(f"s_min_u32 s{sT1}, s{sT1}, 2000000")
        k(f"v_readlane_b32 s{sT0}, v{vSt}, {i-1}")
        k("s_nop 3")
        k.label("AMP")
        k(f"s_memtime {sr(sStamp,2)}")
        k("s_waitcnt lgkmcnt(0)")
        k(f"s_sub_u32 s{sT2}, s{sStamp}, s{sT0}")
        k(f"s_cmp_lt_u32 s{sT2}, s{sT1}")
        k("s_cbranch_scc1 AMP")
k.label("L_end")
k("s_endpgm")
for f in outofline: f()
k.label("L_last")
k("s_endpgm")

hdr = open("gated_mix__sliding_block__dense_activation_silu__prompt.s.ref").read().split("\n")
hdr = [l for l in hdr if l.startswith(";") and "@launch" not in l]
out = "\n".join(hdr) + f"\n; @launch grid=(256,1,1) block=(256,1,1) lds={LDS_BYTES}\n"
out += f""".amdgcn_target "amdgcn-amd-amdhsa--gfx950"
.text
.globl {KNAME}
.p2align 8
.type {KNAME},@function
""" + k.text() + f"""
.section .rodata,"a"
.p2align 6
.amdhsa_kernel {KNAME}
  .amdhsa_next_free_vgpr 512
  .amdhsa_next_free_sgpr 102
  .amdhsa_accum_offset 256
  .amdhsa_group_segment_fixed_size 0
  .amdhsa_kernarg_size 80
  .amdhsa_user_sgpr_count 2
  .amdhsa_user_sgpr_kernarg_segment_ptr 1
  .amdhsa_system_sgpr_workgroup_id_x 1
.end_amdhsa_kernel
"""
open(sys.argv[1], "w").write(out)
open(sys.argv[1][:-2] + ".names", "w").write(" ".join(stnames))
print("nops inserted:", k.nops, [(a, b, c[:40]) for a, b, c in k.log][:60], file=sys.stderr)
```
